```python
import torch

def _softmax(x, axis=-1):
    return torch.softmax(x, dim=axis)
def _gelu(x):
    return torch.nn.functional.gelu(x, approximate="tanh")
def _silu(x):
    return torch.nn.functional.silu(x)
def _sigmoid(x):
    return torch.sigmoid(x)
def _layernorm(x, axis=-1, eps=1e-5):
    m = x.mean(dim=axis, keepdim=True)
    v = x.var(dim=axis, keepdim=True, unbiased=False)
    return (x - m) / torch.sqrt(v + eps)
def _scatter_add(tgt, idx, src, axis=0):
    return tgt.clone().index_add_(axis, idx, src)
def _segment_sum(src, seg, n):
    out = torch.zeros((n,) + src.shape[1:], dtype=src.dtype)
    return out.index_add_(0, seg, src)
def _pad(x, pw):
    flat = tuple(v for pair in reversed(pw) for v in pair)
    return torch.nn.functional.pad(x, flat)

kernel_name = 'parallel_sum__sliding_local_dilated__glu_gated_swiglu__prompt'

def setup_inputs():

    _w = (lambda a: (lambda t: t.to(torch.bfloat16) if t.is_floating_point() else t)(torch.as_tensor(a)))
    def _A_setup():
        B, S, D = 1, 2048, 512
        return {
            "x": _w((lambda *s: torch.randn(*s, dtype=torch.bfloat16) * 0.05)(B, S, D)),
            "wqkv": _w((lambda *s: torch.randn(*s, dtype=torch.bfloat16) * 0.05)(D, 3 * D)),
            "wo": _w((lambda *s: torch.randn(*s, dtype=torch.bfloat16) * 0.05)(D, D)),
        }
    _A_in = _A_setup()

    def _B_setup():
        B, S, D, F = 1, 2048, 512, 1792
        return {
            "x": _w((lambda *s: torch.randn(*s, dtype=torch.bfloat16) * 0.05)(B, S, D)),
            "w1": _w((lambda *s: torch.randn(*s, dtype=torch.bfloat16) * 0.8)(D, F) * (2.0 / D) ** 0.5),
            "w3": _w((lambda *s: torch.randn(*s, dtype=torch.bfloat16) * 0.8)(D, F) * (2.0 / D) ** 0.5),
            "w2": _w((lambda *s: torch.randn(*s, dtype=torch.bfloat16) * 0.8)(F, D) * (2.0 / F) ** 0.5),
        }
    _B_in = _B_setup()

    return {
        "A_x": _A_in["x"],
        "A_wqkv": _A_in["wqkv"],
        "A_wo": _A_in["wo"],
        "B_x": _B_in["x"],
        "B_w1": _B_in["w1"],
        "B_w3": _B_in["w3"],
        "B_w2": _B_in["w2"],
    }

def reference(A_x, A_wqkv, A_wo, B_x, B_w1, B_w3, B_w2):
    def _A_ref(x, wqkv, wo):
        B, S, D = x.shape
        H = 32; Dh = D // H
        W, dil = 8, 2
        qkv = (lambda x, *d: x.permute(*d))((x @ wqkv).reshape(B, S, 3, H, Dh), 2, 0, 3, 1, 4)
        q, k, v = qkv[0], qkv[1], qkv[2]
        scale = Dh ** -0.5
        pos = torch.arange(S)
        off = torch.arange(W) * dil
        idx = pos[:, None] - off[None, :]
        mask = idx >= 0
        idx_c = torch.where(mask, idx, 0).reshape(-1)
        kg = k[:, :, idx_c, :].reshape(B, H, S, W, Dh)
        vg = v[:, :, idx_c, :].reshape(B, H, S, W, Dh)
        logits = torch.einsum("bhsd,bhswd->bhsw", q, kg) * scale
        logits = torch.where(mask[None, None, :, :], logits, -1e9)
        attn = _softmax(logits, axis=-1)
        o = torch.einsum("bhsw,bhswd->bhsd", attn, vg)
        return (lambda x, *d: x.permute(*d))(o, 0, 2, 1, 3).reshape(B, S, D) @ wo

    def _B_ref(x, w1, w3, w2):
        gate = torch.einsum("bsd,df->bsf", x, w1)
        up = torch.einsum("bsd,df->bsf", x, w3)
        h = _silu(gate) * up
        out = torch.einsum("bsf,fd->bsd", h, w2)
        return out

    x = A_x
    xn = _layernorm(x, axis=-1)
    return x + _A_ref(xn, A_wqkv, A_wo) + _B_ref(xn, B_w1, B_w3, B_w2)
```

```python
import re

REG_RE = re.compile(r"^(-?)(?:abs\()?([vsa])(?:\[(\d+):(\d+)\]|(\d+))\)?$")

def regs_of(tok):
    tok = tok.strip()
    if tok in ("vcc", "exec"): return [tok]
    if tok in ("vcc_lo", "vcc_hi"): return ["vcc"]
    if tok in ("exec_lo", "exec_hi"): return ["exec"]
    if tok == "m0": return ["m0"]
    m = REG_RE.match(tok)
    if not m: return []
    k = m.group(2)
    if m.group(5) is not None: return [f"{k}{m.group(5)}"]
    return [f"{k}{i}" for i in range(int(m.group(3)), int(m.group(4)) + 1)]

TRANS = ("v_exp_f32", "v_rcp_f32", "v_rsq_f32", "v_sqrt_f32", "v_log_f32")

class Ins:
    def __init__(self, text, tag=None, cond=False, anchor=False):
        self.text = text.strip()
        self.tag = tag
        self.cond = cond
        self.anchor = anchor
        self.parse()
    def parse(self):
        t = self.text
        self.rd = set(); self.wr = set(); self.srcc = set(); self.srcab = set()
        if t.endswith(":") or t.startswith(".") or t.startswith(";"):
            self.kind = "label"; self.op = t; return
        sp = t.split(None, 1)
        op = sp[0]; self.op = op
        rest = sp[1] if len(sp) > 1 else ""
        ops = [o.strip() for o in rest.split(",")] if rest else []
        mods = []
        if ops:
            last = ops[-1].split()
            ops2 = []; acc = ""
            depth = 0
            for piece in rest.split(","):
                acc = acc + "," + piece if acc else piece
                depth = acc.count("[") - acc.count("]")
                if depth == 0:
                    ops2.append(acc.strip()); acc = ""
            ops = ops2
            last = ops[-1].split()
            ops[-1] = last[0]; mods = last[1:]
        self.mods = mods
        R = lambda i: set(regs_of(ops[i])) if i < len(ops) else set()
        allr = lambda lo: set().union(*[R(i) for i in range(lo, len(ops))]) if len(ops) > lo else set()
        if op == "WAIT":
            self.kind = "WAIT"; return
        if op.startswith("v_mfma"):
            self.kind = "mfma"; self.wr = R(0); self.srcab = R(1) | R(2); self.srcc = R(3); self.rd = self.srcab | self.srcc
            assert "16x16" in op
        elif op.startswith("v_"):
            self.kind = "valu"
            self.wr = R(0); self.rd = allr(1)
            if op.startswith("v_permlane") or op.startswith("v_swap"):
                self.wr = R(0) | R(1); self.rd = set(self.wr)
            if op.startswith("v_fmac") or op.startswith("v_dot2c") or "_dpp" in op:
                self.rd |= R(0)
            if op.startswith("v_add_co") or op.startswith("v_addc_co"):
                self.wr |= R(1)
        elif op.startswith("ds_read"):
            self.kind = "dsr"; self.wr = R(0); self.rd = allr(1)
        elif op.startswith("ds_write"):
            self.kind = "dsw"; self.rd = allr(0)
        elif op.startswith("buffer_load") or op.startswith("global_load"):
            if "lds" in mods:
                self.kind = "dma"; self.rd = allr(0) | {"m0"}
            else:
                self.kind = "vld"; self.wr = R(0); self.rd = allr(1)
        elif op.startswith("buffer_store"):
            self.kind = "vst"; self.rd = allr(0); self.data = R(0)
        elif op.startswith("global_store"):
            self.kind = "vst"; self.rd = allr(0); self.data = R(1)
        elif op.startswith("s_load") or op.startswith("s_memrealtime") or op.startswith("s_memtime"):
            self.kind = "smem"; self.wr = R(0); self.rd = allr(1)
        elif op == "s_waitcnt": self.kind = "waitcnt"
        elif op == "s_barrier": self.kind = "barrier"
        elif op == "s_nop": self.kind = "nop"; self.n = int(ops[0]) + 1
        elif op.startswith("s_cbranch") or op == "s_branch" or op == "s_endpgm": self.kind = "branch"
        elif op.startswith("s_cmp") or op in ("s_setprio", "s_sleep"):
            self.kind = "salu"; self.rd = allr(0)
        elif op.startswith("s_"):
            self.kind = "salu"; self.wr = R(0); self.rd = allr(1)
        else:
            raise ValueError("unknown instr " + t)
        self.trans = op.startswith(TRANS)
    def __repr__(self): return self.text

class Wait(Ins):
    def __init__(self, *tags):
        self.tags = set(tags)
        super().__init__("WAIT")

def I(text, **kw):
    return [Ins(l, **kw) for l in text.strip().split("\n") if l.strip()]

def flat(x):
    out = []
    for e in x:
        if isinstance(e, (list, tuple)): out.extend(flat(e))
        else: out.append(e)
    return out

def weave(main, side, a0, a1):
    idx = [i for i, x in enumerate(main) if x.anchor]
    n = a1 - a0
    assert 0 <= a0 < a1 <= len(idx), (a0, a1, len(idx))
    ins_after = {}
    m = len(side)
    for k, it in enumerate(side):
        a = a0 + (k * n) // m
        ins_after.setdefault(a, []).append(it)
    out = []
    anchor_no = -1
    pend = []
    for i, x in enumerate(main):
        if x.anchor or x.kind in ("barrier",) or (x.kind == "WAIT" and getattr(x, "fence", False)):
            out.extend(flat(pend)); pend = []
        out.append(x)
        if x.anchor:
            anchor_no += 1
            pend = ins_after.get(anchor_no, [])
    out.extend(flat(pend))
    return out

def insert_waits(prog):
    out = []
    lg = []
    vm = []
    def need(q, pred):
        last = -1
        for i, o in enumerate(q):
            if pred(o): last = i
        if last < 0: return None
        return last
    def emit(nv, nl):
        parts = []
        if nv is not None: parts.append(f"vmcnt({nv})")
        if nl is not None: parts.append(f"lgkmcnt({nl})")
        if parts: out.append(Ins("s_waitcnt " + " ".join(parts)))
    for x in prog:
        nv = nl = None
        if x.kind == "WAIT":
            pl = need(lg, lambda o: o.tag in x.tags); pv = need(vm, lambda o: o.tag in x.tags)
        elif x.kind in ("label", "nop", "barrier", "branch"):
            pl = pv = None
        elif x.kind == "waitcnt":
            m = re.search(r"vmcnt\((\d+)\)", x.text)
            if m:
                assert int(m.group(1)) == 0; vm = []
            m = re.search(r"lgkmcnt\((\d+)\)", x.text)
            if m:
                assert int(m.group(1)) == 0; lg = []
            out.append(x); continue
        else:
            touch = x.rd | x.wr
            pl = need(lg, lambda o: o.wr & touch); pv = need(vm, lambda o: o.wr & touch)
        if pl is not None:
            if any(o.kind == "smem" for o in lg): nl = 0; lg = []
            else:
                nl = min(15, sum(1 for o in lg[pl+1:] if not o.cond)); lg = lg[pl+1:]
        if pv is not None:
            nv = min(63, sum(1 for o in vm[pv+1:] if not o.cond)); vm = vm[pv+1:]
        assert not (x.cond and (nv is not None or nl is not None)), ('wait inside cond block', x.text)
        emit(nv, nl)
        if x.kind == "WAIT": continue
        out.append(x)
        if x.kind in ("dsr", "dsw", "smem"): lg.append(x)
        if x.kind in ("dma", "vld", "vst"): vm.append(x)
    return out

def hazard_need(p, c):
    n = 0
    pv = {r for r in p.wr if r[0] in "va" and r != "vcc"}
    ps = p.wr - pv
    if p.kind == "valu":
        if c.kind == "mfma" and pv & c.rd: n = max(n, 2)
        if c.kind == "valu":
            if p.trans and not c.trans and pv & c.rd: n = max(n, 1)
            if (c.op.startswith("v_permlane") or "_dpp" in c.op) and pv & c.rd: n = max(n, 2)
            if c.op.startswith("v_read") and pv & c.rd: n = max(n, 1)
            if ps & c.rd: n = max(n, 4 if c.op.startswith("v_readlane") else 2)
            if p.op.startswith("v_dot2") and (pv & (c.rd | c.wr)):
                if c.op != p.op: n = max(n, 3)
        if c.kind in ("dma", "vld", "vst") and ps & c.rd: n = max(n, 5)
        if p.op.startswith("v_dot2") and c.kind in ("vst", "dsw", "mfma") and pv & c.rd: n = max(n, 3)
    if p.kind == "mfma":
        if c.kind == "mfma":
            if p.wr & c.srcab: n = max(n, 8)
            if p.wr & c.srcc and p.wr != c.srcc: n = max(n, 6)
            if p.wr & c.wr and not (p.wr & c.srcc): n = max(n, 6)
        elif c.kind in ("valu", "dsr", "dsw", "vld", "vst", "dma"):
            if p.wr & (c.rd | c.wr): n = max(n, 8)
            if c.kind == "valu" and p.srcc & c.wr: n = max(n, 3)
    if p.kind == "vst" and len(p.data) >= 3:
        if p.data & c.wr: n = max(n, 2)
    if p.kind == "salu" and "m0" in p.wr and c.kind == "dma": n = max(n, 1)
    return n

def insert_nops(prog):
    out = []
    stats = 0
    for x in prog:
        if x.kind == "label":
            out.append(x); continue
        need = 0
        dist = 0
        for p in reversed(out):
            if p.kind == "label": continue
            if dist >= 9: break
            h = hazard_need(p, x)
            if h - dist > need: need = h - dist
            if not p.cond or x.cond: dist += p.n if p.kind == "nop" else 1
        if need > 0:
            out.append(Ins(f"s_nop {need-1}")); stats += need
        out.append(x)
    return out, stats

def finalize(prog):
    prog = flat(prog)
    prog = insert_waits(prog)
    prog, st = insert_nops(prog)
    return prog, st
```

```python
import sys, json
from fw import *

KN = "parallel_sum__sliding_local_dilated__glu_gated_swiglu__prompt"
H_OFF, KVH_OFF, ST_OFF, CS_OFF, FL_OFF, HF_OFF, WS_SIZE = 0, 0xA00000, 0xB00000, 0xB10000, 0xC00000, 0xC40000, 0x1000000
STAMP_OFF = 128 << 20
OOR = 0x40000000
U = lambda n: n * 16384
MREG = U(8)
V_OFF = MREG
K_OFF = MREG + 20480
CT_OFF = MREG + 28672
SX, SP1, SPF, SW2, SWO, SWS, SOUT, SHS, SHL = [f"s[{4*i+4}:{4*i+7}]" for i in range(9)]
SCS = SHS
sN = "s[40:41]"; sN0, sN1 = "s40", "s41"
(sW, sRB, sCH, sR, sG, sCQ, sJ, sM, sMX, sXo, sC1, sC2, sC3, sW2o, sWOo, sT, sT2, sHo, sFo, sAo, sCSo, sSTo) = [f"s{i}" for i in range(42, 64)]
sDBG = "s[80:81]"
(sThr, sKV, sHF, sCnt, sOo, sPar) = [f"s{i}" for i in range(84, 90)]
sEx0 = "s[90:91]"; sE48 = "s[92:93]"; sExK = "s[94:95]"; sLo16 = "s96"; sCS5 = "s97"; sTmp2 = "s[98:99]"
sStr, sCSs, sCSm = "s70", "s71", "s3"
vL16, vT0, vT1, vWa, vWb, vCT, vCS = "v1", "v2", "v3", "v4", "v5", "v6", "v7"
vN0, vN1 = "v8", "v9"
vC1 = ["v10", "v11"]; vC2 = ["v12", "v13"]
vMn = [14, 16]
vXR0, vXR1, vX0, vX1 = "v18", "v19", "v20", "v21"
vT2, vT3, vTH, vFl = "v18", "v19", "v20", "v21"
vP = 22
TMP = 24
WF = [32, 48]
ACC1, ACC0 = 64, 96
X0 = 128
def q(r, n=4): return f"v[{r}:{r+n-1}]"
def XF(ks, b): return X0 + 8*ks + 4*b
LOG2E = 0x3fb8aa3b

CFG = dict(
    stamps=False, mimic=True,
    bars=[0,2,4,6,8,10,12,14,16,18,20,24,28,32,36,40,42,44,46,48,50,52,55],
    pace1=2.5, pace2=3.5, pace3=2.0, pace3_from=312, maxlead1=32,
    pre_units=2,
    cs_after=3,
    cspub=(66, 86),
    csld=112, cschk=(126, 136),
    epi1=(137, 190), kv=(137, 170), hflag=186, qepi=(194, 210), hpoll=212, hchk=224, att=(227, 284), oflag=302,
    aflag=212, hepi=(194, 226), hfl=248,
    p0=268, c0=282, p1=318, c1=324, lflag=336, p2=366, c2=380, p3=396, c3=408,
    out_flags="",
)

class DsAddr:
    def __init__(self, reg): self.reg = reg; self.bias = 0
    def at(self, target):
        pre = []
        if not (0 <= target - self.bias <= 65535):
            nb = target & ~0xffff
            pre = I(f"v_add_u32 {self.reg}, {(nb - self.bias) & 0xffffffff:#x}, {self.reg}")
            self.bias = nb
        return pre, target - self.bias

slow = []
lab = [0]
def newlab(p):
    lab[0] += 1
    return f"L_{p}{lab[0]}"
def stamp(i):
    if not CFG["stamps"]: return []
    r = Ins(";raw")
    r.sid = i
    return [r]
SPIN_ID = {"nonce": 48, "cs": 49, "st": 51, "halo": 52, "p0": 53, "p1": 54, "p2": 55, "p3": 56}
def spin(name, reload_text, check_text):
    ls, lb, ll = newlab("slow"), newlab("back"), newlab("loop")
    body = finalize(I(f"s_waitcnt vmcnt(0) lgkmcnt(0)\ns_nop 7") + I(reload_text) + I(check_text))[0]
    slow.append(f"{ls}:\ns_mov_b32 {sCnt}, 0\n{ll}:\n" + "\n".join(x.text for x in body) +
                f"\ns_cbranch_vccz {lb}z\ns_add_u32 {sCnt}, {sCnt}, 1\ns_cmp_lt_u32 {sCnt}, 0x8000\ns_cbranch_scc1 {ll}\n{lb}z:\n" +
                (f"s_add_u32 {sCnt}, {sCnt}, 1\nv_writelane_b32 v0, {sCnt}, {SPIN_ID[name]}\n" if CFG["stamps"] else "") + f"s_nop 7\ns_branch {lb}")
    return [I(check_text) + I(f"s_cbranch_vccnz {ls}\n{lb}:")]

def mf32(d, a, b, c, anchor=False):
    return Ins(f"v_mfma_f32_16x16x32_bf16 {q(d)}, {q(a)}, {q(b)}, {q(c) if c is not None else 0}", anchor=anchor)
def mf16(d, a, b, c):
    return Ins(f"v_mfma_f32_16x16x16_bf16 {q(d)}, {q(a,2)}, {q(b,2)}, {q(c) if c is not None else 0}")

S2_SRC = [("w2", 2), ("w2", 4), ("w2", 6), ("wo", 0), ("wo", 1), ("w2", 3), ("w2", 5), ("w2", 0), ("w2", 1)]
AREG_BASE = [160, 168, 176, 184, 192, 200,   128, 136, 144, 152,   208, 216, 224, 232, 240, 248, 160, 168]

def swz8(tmp):
    return f"v_lshrrev_b32 {tmp}, 3, {vL16}\nv_and_b32 {tmp}, 0x60, {tmp}\nv_xor_b32 {tmp}, {tmp}, {vL16}\nv_and_b32 {tmp}, 0x70, {tmp}\n"
def lane_T(dst, st, tmp):
    return I(f"""
v_lshrrev_b32 {dst}, 2, {vL16}
v_xor_b32 {dst}, {st}, {dst}
v_and_b32 {dst}, 0x60, {dst}
v_lshrrev_b32 {tmp}, 1, {vL16}
v_and_b32 {tmp}, 0x18, {tmp}
v_add_u32 {dst}, {dst}, {tmp}
v_lshlrev_b32 {tmp}, 1, {vL16}
v_and_b32 {tmp}, 0x380, {tmp}
v_add_u32 {dst}, {dst}, {tmp}
v_lshrrev_b32 {tmp}, 9, {vL16}
v_lshl_add_u32 {dst}, {tmp}, 11, {dst}
""")
def srd(name, lo, size):
    b = int(name[2:name.index(":")])
    return I(f"s_mov_b32 s{b}, s{lo}\ns_and_b32 s{b+1}, s{lo+1}, 0xffff\ns_mov_b32 s{b+2}, {size:#x}\ns_mov_b32 s{b+3}, 0x20000")

def dma1(sm, lds, vo, srdn, sb, imm, tag):
    return I(f"s_add_u32 m0, {sm}, {lds:#x}\ns_add_u32 {sT}, {sb}, {imm:#x}") + I(f"buffer_load_dwordx4 {vo}, {srdn}, {sT} offen lds", tag=tag)

def common_prologue():
    P = I(f"""
s_cmp_ge_u32 s2, 256
s_cbranch_scc1 L_end
s_load_dwordx16 s[64:79], s[0:1], 0
s_load_dwordx4 s[80:83], s[0:1], 64
s_memrealtime {sN}
v_lshrrev_b32 v24, 6, v0
v_and_b32 {vL16}, 63, v0
v_readfirstlane_b32 {sW}, v24
v_lshlrev_b32 {vL16}, 4, {vL16}
s_and_b32 {sCQ}, s2, 3
s_bfe_u32 {sR}, s2, 0x10002
s_lshl_b32 {sR}, {sR}, 3
s_bfe_u32 {sT}, s2, 0x30003
s_add_u32 {sR}, {sR}, {sT}
s_lshr_b32 {sJ}, s2, 6
s_and_b32 {sPar}, {sCQ}, 1
s_and_b32 {sRB}, {sW}, 3
s_lshr_b32 {sCH}, {sW}, 2
s_lshl_b32 {sM}, {sW}, 11
s_lshl_b32 {sMX}, {sRB}, 12
s_lshl_b32 {sT}, {sCH}, 11
s_add_u32 {sMX}, {sMX}, {sT}
s_lshl_b32 {sHo}, {sR}, 2
s_add_u32 {sHo}, {sHo}, {sRB}
s_lshl_b32 {sXo}, {sHo}, 5
s_xor_b32 {sT}, {sCH}, {sPar}
s_add_u32 {sXo}, {sXo}, {sT}
s_lshl_b32 {sXo}, {sXo}, 10
v_lshrrev_b32 v24, 7, {vL16}
v_lshrrev_b32 v25, 4, {vL16}
v_and_b32 v25, 0x30, v25
v_xor_b32 v25, v25, {vL16}
v_and_b32 v25, 0x70, v25
v_lshl_add_u32 {vX0}, v24, 11, v25
v_xor_b32 {vX1}, 64, {vX0}
v_add_u32 {vX1}, 0x4000, {vX1}
s_and_b32 {sT}, {sRB}, 1
s_lshl_b32 {sT}, {sT}, 4
s_lshr_b32 {sT2}, {sRB}, 1
s_lshl_b32 {sT2}, {sT2}, 2
s_add_u32 {sT}, {sT}, {sT2}
v_lshrrev_b32 v26, 9, {vL16}
v_lshlrev_b32 v26, 3, v26
v_bfe_u32 v27, {vL16}, 7, 2
v_add3_u32 v26, v26, v27, {sT}
{swz8("v27")}s_mov_b32 s6, 0x200000
s_mov_b32 s7, 0x20000
s_mov_b32 s14, 0x1c0000
s_mov_b32 s15, 0x20000
s_cmp_eq_u32 {sCH}, 0
s_waitcnt lgkmcnt(0)
s_cselect_b32 s12, s72, s74
s_cselect_b32 s13, s73, s75
s_mov_b32 s4, s64
s_and_b32 s5, s65, 0xffff
s_and_b32 s13, s13, 0xffff
""")
    P += I(f"s_cmp_lt_u32 {sJ}, 2\ns_cbranch_scc0 L_F\n; SPLIT")
    return P

def stats_compute(t):
    red = lambda r: "\n".join([f"v_add_f32_dpp {r}, {r}, {r} row_shr:{d} row_mask:0xf bank_mask:0xf bound_ctrl:0" for d in (1,2,4,8)] +
                              [f"v_add_f32_dpp {r}, {r}, {r} row_bcast:15 row_mask:0xa bank_mask:0xf",
                               f"v_add_f32_dpp {r}, {r}, {r} row_bcast:31 row_mask:0xc bank_mask:0xf"])
    s = ""
    for i in range(4):
        s += f"v_lshlrev_b32 v{t+2*i}, 16, v{28+i}\nv_and_b32 v{t+2*i+1}, 0xffff0000, v{28+i}\n"
    s += f"v_add_f32 v24, v{t}, v{t+1}\nv_add_f32 v25, v{t+2}, v{t+3}\nv_add_f32 v26, v{t+4}, v{t+5}\nv_add_f32 v27, v{t+6}, v{t+7}\n"
    s += "v_add_f32 v24, v24, v25\nv_add_f32 v26, v26, v27\nv_add_f32 v24, v24, v26\n"
    s += red("v24") + "\nv_mul_f32 v24, 0x3b000000, v24\n"
    s += f"v_readlane_b32 {sThr}, v24, 63\n"
    for i in range(8): s += f"v_subrev_f32 v{t+i}, {sThr}, v{t+i}\n"
    s += f"v_mul_f32 v26, v{t}, v{t}\nv_mul_f32 v27, v{t+1}, v{t+1}\n"
    for i in range(2, 8): s += f"v_fmac_f32 v{26+(i&1)}, v{t+i}, v{t+i}\n"
    s += "v_add_f32 v26, v26, v27\n" + red("v26") + "\n"
    rnd = lambda r: f"v_cvt_pk_bf16_f32 {r}, {r}, {r}\nv_lshlrev_b32 {r}, 16, {r}\n"
    s += "v_mul_f32 v26, 0x3b000000, v26\n"
    if CFG["mimic"]: s += rnd("v26") + rnd("v24")
    s += "v_add_f32 v26, 0x3727c5ac, v26\n"
    if CFG["mimic"]: s += rnd("v26")
    s += "v_sqrt_f32 v26, v26\n"
    if CFG["mimic"]: s += rnd("v26")
    return I(s)

def first_k(u):
    kind, n = u
    if kind == "x" or n < 20: return 2*n, 2*n + 1
    return 40 + n - 20, 40 + n - 20
def banchor(k): return max(0, 8*(k-1))

def plan(ty):
    bars = CFG["bars"]
    order = []
    for h in range(8): order += [("x", h), ("w", h)]
    order += [("w", n) for n in range(8, 38)]
    free = {s: -1 for s in range(8)}
    extra = CFG.get("extra_" + ty)
    if extra: free[extra[0]] = extra[1]
    slot = {}; earliest = {}; vis = {}
    for u in order:
        s = min(free, key=lambda s: (free[s], s))
        assert free[s] < 999, ("no slot", u)
        slot[u] = s; earliest[u] = free[s]
        f, l = first_k(u)
        vis[u] = max(b for b in bars if b <= f)
        rel = [b for b in bars if b > l]
        free[s] = rel[0] if rel else 999
    return order, slot, earliest, vis

def build_main(ty, slot, vis, extra_tags):
    aT = [DsAddr(vT0), DsAddr(vT1), DsAddr(vT2), DsAddr(vT3)]
    aH = DsAddr(vTH); aX = [DsAddr(vXR0), DsAddr(vXR1)]
    ks = []
    def trpair(a, dst, t0, de, tag):
        out = []
        for e in range(2):
            pre, off = a.at(t0 + e*de)
            out.append(pre + I(f"ds_read_b64_tr_b16 {q(dst+2*e,2)}, {a.reg} offset:{off}", tag=tag))
        return out
    for k in range(40):
        n, s = k >> 1, k & 1
        wf = WF[k & 1]; tag = f"r{k}"; base = U(slot[("w", n)])
        if n < 8 or n >= 12:
            kk = k if n < 8 else k - 24
            def rd(n=n, s=s, wf=wf, tag=tag, kk=kk, base=base):
                r = []
                if n < 8:
                    for b in range(2):
                        pre, off = aX[s].at(U(slot[("x", n)]) + 2048*b)
                        r.append(pre + I(f"ds_read_b128 {q(XF(kk,b))}, {aX[s].reg} offset:{off}", tag=tag))
                for f in range(4):
                    r += trpair(aT[f&1], wf+4*f, base + (f>>1)*8192 + s*1024, 4096, tag)
                return r
            mf = [mf32(ACC0+(2*f+b)*4, wf+4*f, XF(kk,b), None if kk == 0 else ACC0+(2*f+b)*4, True) for f in range(4) for b in range(2)]
        else:
            def rd(s=s, wf=wf, tag=tag, base=base):
                r = []
                for h in range(2):
                    for f in range(2):
                        if ty == "T": r += trpair(aT[f], wf+8*h+4*f, base + s*8192 + h*1024, 4096, tag)
                        else:         r += trpair(aH, wf+8*h+4*f, base + f*8192 + s*4096 + h*1024, 2048, tag)
                return r
            mf = []
            for h in range(2):
                kk = 4*(n-8) + 2*s + h
                mf += [mf32(ACC1+(2*f+b)*4, wf+8*h+4*f, XF(kk,b), None if kk == 0 else ACC1+(2*f+b)*4, True) for f in range(2) for b in range(2)]
        ks.append((rd, mf))
    for t in range(18):
        k = 40 + t; wf = WF[k & 1]; tag = f"r{k}"; base = U(slot[("w", 20+t)])
        def rd(wf=wf, tag=tag, t=t, base=base):
            r = []
            if t == 0:
                for a in aT: a.bias = 0
                r.append(I(f"v_mov_b32 {vT0}, {vTH}\nv_xor_b32 {vT1}, 32, {vTH}\nv_xor_b32 {vT2}, 64, {vTH}\nv_xor_b32 {vT3}, 0x60, {vTH}"))
            for f in range(4):
                r += trpair(aT[f], wf+4*f, base, 4096, tag)
            return r
        A = AREG_BASE[t]
        mf = [mf32(ACC1+(2*f+b)*4, wf+4*f, A+4*b, None if t == 0 else ACC1+(2*f+b)*4, True) for f in range(4) for b in range(2)]
        if t in (4, 5):
            mf[0] = [I(f"v_swap_b32 v{A+2}, v{A+4}\nv_swap_b32 v{A+3}, v{A+5}"), mf[0]]
        ks.append((rd, mf))
    def barrier(k):
        if k not in CFG["bars"]: return []
        tags = [f"{u[0]}{u[1]}" for u in vis if vis[u] == k] + [f"r{k-1}"] + extra_tags.get(k, [])
        w = Wait(*tags); w.fence = True
        return [w, Ins("s_barrier")] + stamp(5 + CFG["bars"].index(k))
    main = barrier(0) + flat(ks[0][0]())
    for i, (rd0, mfs) in enumerate(ks):
        rd = []
        if i + 1 < len(ks):
            main += barrier(i + 1)
            rd = ks[i+1][0]()
        for m in mfs:
            main += flat([m])
            main += flat(rd[:2]); rd = rd[2:]
        assert not rd
    return main

def corr(acc, tiles, gap=3):
    it = []
    for n, (f, off) in enumerate(tiles):
        it += I(f"ds_read2_b32 {q(TMP+2*n,2)}, {vCT} offset0:{off} offset1:{off}")
    it += [[]] * gap
    m = []
    for b in range(2):
        for n, (f, off) in enumerate(tiles):
            d = acc + (2*f+b)*4
            m.append(mf16(d, TMP+2*n, vMn[b], d))
    return it, m

def silu(G, Uu, b):
    it = []
    for A, B in [(G[i:i+4], Uu[i:i+4]) for i in range(0, len(G), 4)]:
        it += [Ins(f"v_mul_f32 v{u}, v{g}, v{u}") for g, u in zip(A, B)]
        it += [Ins(f"v_mul_f32 v{g}, {vC1[b]}, v{g}") for g in A]
        it += [Ins(f"v_exp_f32 v{g}, v{g}") for g in A]
        it += [Ins(f"v_fma_f32 v{g}, v{g}, {vC2[b]}, {vC2[b]}") for g in A]
        it += [Ins(f"v_rcp_f32 v{g}, v{g}") for g in A]
        it += [Ins(f"v_mul_f32 v{u}, v{u}, v{g}") for g, u in zip(A, B)]
    return it
def hstore(reg, piece, tag):
    return [I(f"s_add_u32 {sT2}, {sHo}, {piece*1024:#x}") + I(f"buffer_store_dwordx4 {q(reg)}, {vL16}, {SWS}, {sT2} offen sc1", tag=tag)]
def flag(tag, sbase, imm, srdname=SWS):
    return [[Wait(tag)] + I(f"s_add_u32 {sT2}, {sbase}, {imm:#x}\ns_mov_b64 exec, 1\nbuffer_store_dwordx2 v[8:9], {vL16}, {srdname}, {sT2} offen sc1\ns_mov_b64 exec, -1")]
def ffn_epi(u0, c0, tag):
    rd, m = corr(ACC0, [(0, u0*32), (1, u0*32+16), (2, u0*32+32), (3, u0*32+48)])
    it = m + [[]] * 2
    for b in range(2):
        G = [ACC0+(2*f+b)*4+r for f in (0,1) for r in range(4)]
        Uu = [ACC0+(2*f+b)*4+r for f in (2,3) for r in range(4)]
        it += silu(G, Uu, b)
        d = ACC0 + b*4
        it += [Ins(f"v_cvt_pk_bf16_f32 v{d+i}, v{Uu[2*i]}, v{Uu[2*i+1]}") for i in range(4)]
        it += hstore(d, 4*c0 + b, tag)
    return rd, it

def gen_type(ty):
    C = CFG
    P = []
    T = ty == "T"
    order, slot, earliest, vis = plan(ty)
    if T:
        P += srd(SP1, 66, 0x180000)
        P += I(f"""
s_lshl_b32 {sT}, {sCQ}, 1
s_add_u32 {sKV}, {sT}, {sJ}
s_lshl_b32 {sC2}, {sKV}, 7
s_lshl_b32 {sT}, {sCH}, 10
s_add_u32 {sC1}, {sC2}, {sT}
s_add_u32 {sC1}, {sC1}, 1024
v_mul_u32_u24 {vWa}, 3072, v26
v_add_u32 {vWa}, {vWa}, v27
""")
        st1 = 3072; S1 = SP1; v3 = vWb; v2 = vWa
    else:
        P += I(f"""
s_mul_i32 {sT}, {sCQ}, 7
s_lshl_b32 {sT2}, {sJ}, 1
s_add_u32 {sC1}, {sT}, {sT2}
s_sub_u32 {sC1}, {sC1}, 2
s_lshl_b32 {sC1}, {sC1}, 7
v_mul_u32_u24 {vWa}, 3584, v26
v_add_u32 {vWa}, {vWa}, v27
""")
        st1 = 3584; S1 = SPF; v3 = vWa; v2 = vWb
    vW2 = v2
    def unit_dma(u):
        kind, n = u; tag = f"{kind}{n}"; base = U(slot[u])
        if kind == "x":
            return [dma1(sMX, base + 1024*i, (vX0, vX1)[i], SX, sXo, 128*n, tag) for i in range(2)]
        out = []
        for i in range(2):
            if n < 8:    a = (vWa, S1, sC1, (64*n + 32*i) * st1)
            elif n < 12: a = (v2, SP1 if T else SPF, sC2, (128*(n-8) + 32*i) * (3072 if T else 3584))
            elif n < 20: a = (v3, SPF, sC3, (64*(n-12) + 32*i) * 3584)
            else:
                t = n - 20; kd, uu = S2_SRC[t >> 1]
                if kd == "w2": a = (vW2, SW2, sW2o, ((7*i + uu) * 64 + 32*(t&1)) * 1024)
                else:          a = (vW2, SWO, sWOo, ((2*i + uu) * 64 + 32*(t&1)) * 1024)
            out.append(dma1(sM, base + 1024*i, a[0], a[1], a[2], a[3], tag))
        return out
    P += flat(unit_dma(("x", 0)) + unit_dma(("w", 0)))
    if T:
        P += I(f"s_or_b32 {sT}, s2, {sW}\ns_cmp_lg_u32 {sT}, 0\ns_cbranch_scc1 L_nonon")
        P += I(f"s_or_b32 {sN0}, {sN0}, 1\nv_mov_b32 v28, {sN0}\nv_mov_b32 v29, {sN1}\ns_mov_b64 exec, 1\nglobal_store_dwordx2 {vL16}, v[28:29], {sDBG} sc1\ns_mov_b64 exec, -1", cond=True)
        P += I("L_nonon:")
    P += I(f"s_lshl_b32 {sT}, {sCH}, 6") + lane_T(vT0, sT, "v24") + I(f"v_xor_b32 {vT1}, 32, {vT0}")
    P += I(f"""
v_lshrrev_b32 v24, 8, {vL16}
v_bfe_u32 v25, {vL16}, 5, 3
v_xor_b32 v24, v24, v25
v_lshlrev_b32 v24, 4, v24
v_and_b32 v25, 0xf0, {vL16}
v_lshl_add_u32 v24, v25, 3, v24
s_lshl_b32 {sT}, {sRB}, 12
v_add_u32 {vXR0}, {sT}, v24
v_xor_b32 {vXR1}, 64, {vXR0}
""")
    if T:
        P += I(f"""
v_mul_u32_u24 {vWb}, 3584, v26
v_add_u32 {vWb}, {vWb}, v27
s_mul_i32 {sC3}, {sCQ}, 7
s_add_u32 {sC3}, {sC3}, {sJ}
s_lshl_b32 {sC3}, {sC3}, 7
s_mul_i32 {sT}, {sCH}, {64*3072}
s_add_u32 {sC2}, {sC2}, {sT}
""")
    else:
        P += I(f"""
s_add_u32 {sC3}, {sC1}, 128
s_mul_i32 {sC2}, {sCQ}, 896
s_lshl_b32 {sT}, {sJ}, 6
s_add_u32 {sC2}, {sC2}, {sT}
s_add_u32 {sC2}, {sC2}, 640
s_lshr_b32 {sT}, {sRB}, 1
s_lshl_b32 {sT}, {sT}, 6
s_and_b32 {sT2}, {sRB}, 1
s_lshl_b32 {sT2}, {sT2}, 2
s_add_u32 {sT}, {sT}, {sT2}
v_lshrrev_b32 {vWb}, 8, {vL16}
v_lshlrev_b32 {vWb}, 3, {vWb}
v_bfe_u32 v24, {vL16}, 6, 2
v_add3_u32 {vWb}, {vWb}, v24, {sT}
v_mul_u32_u24 {vWb}, 3584, {vWb}
v_lshrrev_b32 v24, 3, {vL16}
v_and_b32 v24, 0x20, v24
v_xor_b32 v24, v24, {vL16}
v_and_b32 v24, 0x30, v24
v_add_u32 {vWb}, {vWb}, v24
""")
    P += I(f"""
s_lshl_b32 {sT}, {sJ}, 4
s_add_u32 {sT}, {sT}, {sR}
s_mul_i32 {sT2}, {sT}, 205
s_lshr_b32 {sT2}, {sT2}, 12
s_mul_i32 {sAo}, {sT2}, 20
s_sub_u32 {sT}, {sT}, {sAo}
s_mul_i32 {sCSo}, {sCQ}, 60
s_add_u32 {sAo}, {sAo}, {sCSo}
s_add_u32 {sAo}, {sAo}, {sT}
s_lshl_b32 {sAo}, {sAo}, 2
s_add_u32 {sAo}, {sAo}, {sRB}
s_lshl_b32 {sAo}, {sAo}, 7
s_add_u32 {sAo}, {sAo}, {CS_OFF:#x}
s_cmp_ge_u32 {sT2}, 3
s_cselect_b32 {sAo}, {OOR:#x}, {sAo}
s_cmp_lg_u32 {sCH}, 0
s_cselect_b32 {sAo}, {OOR:#x}, {sAo}
s_mul_i32 {sT2}, {sT2}, 192
s_lshl_b32 {sFo}, {sW}, 3
s_add_u32 {sT2}, {sT2}, {sFo}
s_mul_i32 {sFo}, {sCQ}, 7
s_add_u32 {sFo}, {sFo}, {sT}
s_cmp_lt_u32 {sT}, 13
s_cselect_b32 s32, s72, s74
s_cselect_b32 s33, s73, s75
s_cselect_b32 {sG}, 6, 13
s_sub_u32 {sFo}, {sFo}, {sG}
s_lshr_b32 {sG}, {sT}, 1
s_lshl_b32 {sG}, {sG}, 3
s_and_b32 {sOo}, {sT}, 1
s_add_u32 {sG}, {sG}, {sOo}
s_lshl_b32 {sOo}, {sCQ}, 1
s_add_u32 {sG}, {sG}, {sOo}
s_cmp_lt_u32 {sT}, 6
s_cselect_b32 s32, s66, s32
s_cselect_b32 s33, s67, s33
s_cselect_b32 {sFo}, {sG}, {sFo}
s_cselect_b32 {sStr}, 3072, 3584
s_and_b32 s33, s33, 0xffff
s_lshl_b32 s34, {sStr}, 9
s_mov_b32 s35, 0x20000
s_lshl_b32 {sFo}, {sFo}, 7
s_mul_i32 {sT2}, {sT2}, {sStr}
s_add_u32 {sCSs}, {sT2}, {sFo}
v_lshrrev_b32 v24, 7, {vL16}
v_mad_u32_u24 {vCS}, v24, {sStr}, v27
s_lshl_b32 {sStr}, {sStr}, 6
s_lshl_b32 {sCSm}, {sRB}, 11
s_lshl_b32 {sT}, {sCH}, 10
s_add_u32 {sCSm}, {sCSm}, {sT}
s_lshl_b32 {sG}, {sCQ}, 2
s_add_u32 {sG}, {sG}, {sJ}
s_lshl_b32 {sT2}, {sR}, 4
s_add_u32 {sT2}, {sT2}, {sG}
s_lshl_b32 {sT2}, {sT2}, 3
s_add_u32 {sOo}, {sT2}, {sW}
v_mov_b32 v22, 0
""".replace("s_cselect_b32 s70, 3072, 3584", "s_movk_i32 s70, 3584\ns_cselect_b32 s70, 3072, s70"))
    for h in range(1, C["pre_units"]):
        P += flat(unit_dma(("x", h)) + unit_dma(("w", h)))
    P += stamp(1)

    bars = C["bars"]
    nb = lambda a: min(b for b in bars if banchor(b) >= a)
    pb = lambda a: max(b for b in bars if banchor(b) <= a)
    extra = {}
    extra.setdefault(pb(C["cspub"][0]), []).append("cs")
    extra.setdefault(nb(C["cspub"][1]), []).append("csr")
    extra.setdefault(nb(C["cschk"][1]), []).append("ct")
    assert banchor(nb(C["cschk"][1])) <= C["epi1"][0]
    if T: extra.setdefault(nb(C["kv"][1]), []).append("kvw")
    main = build_main(ty, slot, vis, extra)
    M = [main]
    def W(side, a0, a1=None):
        M[0] = weave(M[0], side, a0, a1 if a1 is not None else a0 + 1)

    s = [srd(SWS, 82, WS_SIZE), srd(SW2, 76, 0x1c0000), srd(SWO, 68, 0x80000), srd(SOUT, 78, 0x200000)]
    s += [I(f"""
s_lshl_b32 {sSTo}, {sHo}, 9
s_add_u32 {sSTo}, {sSTo}, {ST_OFF:#x}
s_lshl_b32 {sHo}, {sHo}, 2
s_add_u32 {sHo}, {sHo}, {sCQ}
s_mul_i32 {sFo}, {sHo}, 640
s_and_b32 {sT}, {sJ}, 1
s_lshl_b32 {sT}, {sT}, 1
s_add_u32 {sT}, {sT}, {sCH}
s_lshl_b32 {sT2}, {sT}, 3
s_add_u32 {sFo}, {sFo}, {sT2}
s_mul_i32 {sHo}, {sHo}, {36*1024}
s_lshl_b32 {sT2}, {sT}, 10
s_add_u32 {sHF}, {sHo}, {sT2}
s_lshl_b32 {sT2}, {sT}, 11
s_add_u32 {sHo}, {sHo}, {sT2}
"""), I(f"""
s_lshr_b32 {sT}, s2, 5
s_lshl_b32 {sT}, {sT}, 7
s_mul_i32 {sW2o}, {sCH}, {14*64*1024}
s_add_u32 {sW2o}, {sW2o}, {sT}
s_lshl_b32 {sWOo}, {sCH}, 18
s_add_u32 {sWOo}, {sWOo}, {sT}
s_cmp_eq_u32 {sRB}, 0
s_cselect_b64 {sEx0}, -1, 0
s_mov_b32 s92, -1
s_mov_b32 s93, 0xffff
s_mov_b32 {sLo16}, 0xffff
""")]
    if T:
        s += [I(f"""
s_lshl_b32 {sT}, {sRB}, 1
s_add_u32 {sT}, {sT}, 2
s_cmp_eq_u32 {sRB}, 3
s_cselect_b32 {sT}, 13, {sT}
s_add_u32 {sCSo}, {sCSo}, {sJ}
s_lshl_b32 {sCSo}, {sCSo}, 1
s_add_u32 {sCSo}, {sCSo}, {sCH}
s_lshl_b32 {sCSo}, {sCSo}, 8
s_add_u32 {sCS5}, {sCSo}, {CS_OFF:#x}
s_lshl_b32 {sT}, {sT}, 9
s_add_u32 {sCSo}, {sCS5}, {sT}
""")]
    else:
        s += [I(f"""
s_and_b32 {sT}, {sRB}, 1
s_mul_i32 {sT}, {sT}, 7
s_lshr_b32 {sT2}, {sRB}, 1
s_add_u32 {sT}, {sT}, {sT2}
s_lshl_b32 {sT2}, {sJ}, 1
s_add_u32 {sT}, {sT}, {sT2}
s_add_u32 {sT}, {sT}, 4
s_add_u32 {sT}, {sT}, {sCSo}
s_lshl_b32 {sT}, {sT}, 1
s_add_u32 {sT}, {sT}, {sCH}
s_lshl_b32 {sT}, {sT}, 8
s_lshl_b32 {sCS5}, {sCSo}, 2
s_add_u32 {sCS5}, {sCS5}, {sT2}
s_add_u32 {sCS5}, {sCS5}, {sCH}
s_lshl_b32 {sCS5}, {sCS5}, 7
s_add_u32 {sCS5}, {sCS5}, {CS_OFF + 12*512 - 512:#x}
s_add_u32 {sCSo}, {sT}, {CS_OFF:#x}
""")]
    W(s, 0, 8)

    nonce_ld = f"global_load_dwordx2 v[8:9], v22, {sDBG} sc1"
    c1r, c5r, str_ = ACC1 + 16, ACC1 + 20, TMP + 4
    v5 = vCS if T else f"v{TMP}"
    cs_ld = (f"buffer_load_dwordx4 {q(c1r)}, {vCS}, {SWS}, {sCSo} offen sc1\nbuffer_load_dwordx4 {q(c5r)}, {v5}, {SWS}, {sCS5} offen sc1\n"
             f"buffer_load_dwordx4 {q(str_)}, v23, {SWS}, {sSTo} offen sc1")
    poll = f"buffer_load_dwordx2 {q(vP,2)}, {vFl}, {SWS}, 0 offen sc1"
    chk = lambda mask: f"v_cmp_ne_u64 vcc, {sN}, {q(vP,2)}\ns_and_b64 vcc, vcc, {mask:#x}"
    def aload(t):
        A = AREG_BASE[t]
        return [I(f"s_add_u32 {sT2}, {sAo}, {2048*t + 1024*b}\nbuffer_load_dwordx4 {q(A+4*b)}, {vL16}, {SWS}, {sT2} offen sc1") for b in range(2)]
    timed = []
    def TM(a, dl, bundles, cost=1):
        for b in bundles: timed.append([a, dl, b, cost, None])
    def AL(a, t0, t1):
        for t in range(t0, t1): TM(a, 320 + 8*t, aload(t))
    TM(C["csld"], 0, [[x] for x in I(cs_ld)])
    TM(C["p0"], 0, [I(poll)]); TM(C["c0"], 0, spin("p0", poll, chk(0xff)), 0); AL(C["c0"], 0, 6)
    TM(C["p1"], 0, [I(poll)]); TM(C["c1"], 0, spin("p1", poll, chk(0xf00)), 0); AL(C["c1"], 6, 10)
    TM(C["p2"], 0, [I(poll)]); TM(C["c2"], 0, spin("p2", poll, chk(0xf000)), 0); AL(C["c2"], 10, 14)
    TM(C["p3"], 0, [I(poll)]); TM(C["c3"], 0, spin("p3", poll, chk(0xf0000)), 0); AL(C["c3"], 14, 18)
    q_units = []
    for u in order:
        if u[1] < C["pre_units"] and (u[0] == "x" or u[1] < 8): continue
        half = (not T) and u[0] == "w" and 8 <= u[1] < 12
        e = banchor(earliest[u]) if earliest[u] >= 0 else 0
        dl = banchor(vis[u])
        if u[1] < 9: e = max(e, dl - C["maxlead1"])
        for b in unit_dma(u):
            q_units.append([e, dl, b, 2 if half else 1, u])
        if u == ("w", C["cs_after"]):
            for n in range(3):
                q_units.append([0, dl, I(f"s_add_u32 m0, {sCSm}, {MREG + 8192*n:#x}\ns_nop 0") + I(f"buffer_load_dwordx4 {vCS}, {SCS}, {sCSs} offen lds", tag="cs") + I(f"s_add_u32 {sCSs}, {sCSs}, {sStr}"), 1, ("cs", 0)])
            q_units.append([0, dl, I(f"s_lshl_b32 {sT2}, {sOo}, 10\nbuffer_load_dwordx4 v[28:31], {vL16}, {SX}, {sT2} offen"), 1, None])
            q_units.append([0, dl, I(nonce_ld), 1, ("cs", 0)])
    vis[("cs", 0)] = pb(C["cspub"][0])
    t = 0.0
    last_issue = {}
    alog = []
    while timed or q_units:
        heads = [qq for qq in (timed, q_units) if qq]
        t = max(t, min(qq[0][0] for qq in heads))
        av = [qq for qq in heads if qq[0][0] <= t]
        qq = min(av, key=lambda z: z[0][1])
        a, dl, b, cost, u = qq.pop(0)
        an = min(int(t), 463)
        W([b], an)
        if u: last_issue[u] = an
        elif dl >= 320: alog.append(dl - an)
        pace = C["pace1"] if t < 128 else C["pace2"] if t < C["pace3_from"] else C["pace3"]
        t += pace * cost
    sys.stderr.write(f"{ty} A-load slack: {alog}\n")
    assert min(alog) > 0
    sys.stderr.write(f"{ty} slack(anchors from last issue to visibility barrier): " + " ".join(f"{u[0]}{u[1]}:{banchor(vis[u]) - last_issue[u]}" for u in last_issue) + "\n")
    assert all(banchor(vis[u]) > last_issue[u] for u in last_issue)
    w2_first = min(a for u, a in last_issue.items() if u == ("w", 20)); p2_last = last_issue[("w", 11)]; x_last = last_issue[("x", 7)]

    tq_ = 224
    s = [I(f"s_lshl_b32 {sT2}, {sRB}, 5") + lane_T(f"v{tq_}", sT2, f"v{tq_+1}")]
    s += I(f"v_add_u32 v{tq_}, {MREG:#x}, v{tq_}")
    fr = ACC1
    for f in range(6):
        for e in range(2): s += I(f"ds_read_b64_tr_b16 {q(fr+4*f+2*e,2)}, v{tq_} offset:{8192*(f>>1) + 1024*(f&1) + 4096*e}", tag="csr")
    s += I("\n".join(f"v_mov_b32 v{tq_+4+i}, 0x3f803f80" for i in range(4)))
    s += I(f"v_lshrrev_b32 v{tq_+1}, 1, {vL16}\nv_mov_b32 v{tq_+2}, {OOR:#x}")
    s += I(f"v_mov_b32_dpp v{tq_+1}, v{tq_+2} quad_perm:[0,1,2,3] row_mask:0xe bank_mask:0xf")
    for f in range(6): s.append(mf32(tq_+8, tq_+4, fr+4*f, tq_+8 if f else None))
    s += spin("nonce", nonce_ld, f"v_cmp_eq_u32 vcc, 0, {vN0}")
    s += I(f"v_readfirstlane_b32 {sN0}, {vN0}\nv_readfirstlane_b32 {sN1}, {vN1}")
    sc = stats_compute(tq_ + 16)
    s += sc[:12]
    s += I(f"v_mov_b32 v{tq_+9}, {vN0}")
    s += I(f"buffer_store_dwordx2 {q(tq_+8,2)}, v{tq_+1}, {SWS}, {sAo} offen sc1")
    s += sc[12:]
    s += I(f"v_mov_b32 v25, {vN0}\nv_mov_b32 v27, {vN0}")
    s += [I(f"s_lshl_b32 {sT2}, {sOo}, 4\ns_add_u32 {sT2}, {sT2}, {ST_OFF:#x}\ns_mov_b32 exec_lo, 0\ns_mov_b32 exec_hi, 0x80000000\nbuffer_store_dwordx4 v[24:27], v22, {SWS}, {sT2} offen sc1\ns_mov_b64 exec, -1")]
    W(s, *C["cspub"])
    assert C["cspub"][1] <= 88
    s = I(f"""v_lshrrev_b32 v{TMP+1}, 8, {vL16}
v_and_b32 {vCS}, 0xf0, {vL16}
v_mov_b32 v{TMP+2}, {OOR:#x}
v_mul_u32_u24 v{TMP}, 10240, v{TMP+1}
v_add_u32 {vCS}, {vCS}, v{TMP}
v_min_u32 v{TMP}, 2, v{TMP+1}
v_mul_u32_u24 v{TMP}, 1280, v{TMP}
v_mov_b32_dpp {vCS}, v{TMP+2} quad_perm:[0,1,2,3] row_mask:0x8 bank_mask:0xf
v_bfe_u32 {vCT}, {vL16}, 4, 4
v_lshl_add_u32 {vCT}, {vCT}, 2, v{TMP}""")
    s += [I(f"s_mul_i32 {sT2}, {sCH}, 640\ns_add_u32 {sT2}, {sT2}, {CT_OFF:#x}\nv_add_u32 {vCT}, {sT2}, {vCT}")]
    s += I(f"v_xor_b32 v{TMP+1}, {sPar}, v{TMP+1}\nv_and_b32 v{TMP+1}, 1, v{TMP+1}\nv_lshlrev_b32 v{TMP+1}, 4, v{TMP+1}\nv_and_b32 v23, 0xf0, {vL16}\nv_lshl_add_u32 v23, v23, 1, v{TMP+1}")
    if not T:
        s += I(f"v_bfe_u32 v{TMP}, {vL16}, 7, 1\nv_mul_u32_u24 v{TMP}, {7*512-128}, v{TMP}\nv_add_u32 v{TMP}, v{TMP}, {vCS}")
    W(s, C["cspub"][1] + 4, C["csld"] - 1)
    MX = vC2[1]
    chk_cs = (f"v_min3_u32 v{vP}, v{c1r+1}, v{c1r+3}, v{c5r+1}\nv_max3_u32 {MX}, v{c1r+1}, v{c1r+3}, v{c5r+1}\n"
              f"v_min3_u32 v{vP}, v{vP}, v{c5r+3}, v{str_+1}\nv_max3_u32 {MX}, {MX}, v{c5r+3}, v{str_+1}\n"
              f"v_min3_u32 v{vP}, v{vP}, v{str_+3}, {vN0}\nv_max3_u32 {MX}, {MX}, v{str_+3}, {vN0}\n"
              f"v_cmp_ne_u32 vcc, v{vP}, {MX}\ns_and_b64 vcc, vcc, {sE48}")
    s = spin("cs", cs_ld, chk_cs)
    for a in (c1r, c5r):
        s += I(f"""v_cvt_pk_bf16_f32 v{a+1}, v{a}, v{a+2}
v_and_b32 v{a+3}, 0xffff0000, v{a+1}
v_lshlrev_b32 v{a+1}, 16, v{a+1}
v_sub_f32 v{a+3}, v{a+2}, v{a+3}
v_sub_f32 v{a+1}, v{a}, v{a+1}
v_cvt_pk_bf16_f32 v{a}, v{a}, v{a+1}
v_cvt_pk_bf16_f32 v{a+1}, v{a+2}, v{a+3}""")
    wa = ACC1 + 24
    s += I(f"v_bfe_u32 v{wa}, {vL16}, 4, 4\nv_lshl_add_u32 v{wa}, v{wa}, 2, {vCT}")
    s += [I(f"s_lshl_b32 {sT2}, {sRB}, 7\nv_add_u32 v{wa+1}, {sT2}, v{wa}")]
    s += [I(f"s_mov_b64 exec, {sE48}") + I(f"ds_write_b64 v{wa+1}, {q(c1r,2)}\nds_write_b64 v{wa}, {q(c5r,2)} offset:512", tag="ct") + I("s_mov_b64 exec, -1")]
    m, sd = str_, str_ + 2
    s += I(f"""v_rcp_f32 v{m+1}, v{sd}
v_mul_f32 {vC2[0]}, v{sd}, v{sd}
v_sub_f32 v{m}, 0, v{m}
v_mul_f32 {vC1[0]}, {LOG2E | 0x80000000:#x}, v{m+1}
v_cvt_pk_bf16_f32 v{vMn[0]}, v{m}, v{m}
v_mov_b32 {vC2[1]}, {vC2[0]}
v_lshlrev_b32 v{m+1}, 16, v{vMn[0]}
v_mov_b32 {vC1[1]}, {vC1[0]}
v_sub_f32 v{m}, v{m}, v{m+1}
v_permlane16_swap_b32 {vC2[0]}, {vC2[1]}
v_cvt_pk_bf16_f32 v{vMn[0]+1}, v{m}, v{m}
v_permlane16_swap_b32 {vC1[0]}, {vC1[1]}
v_mov_b32 v{vMn[1]}, v{vMn[0]}
v_mov_b32 v{vMn[1]+1}, v{vMn[0]+1}
v_mov_b32 v{m}, 0
s_nop 0
v_permlane16_swap_b32 v{vMn[0]}, v{vMn[1]}
v_permlane16_swap_b32 v{vMn[0]+1}, v{vMn[1]+1}""")
    s += [[]]
    s += I("\n".join(f"v_mov_b32_dpp v{vMn[0]+i}, v{m} quad_perm:[0,1,2,3] row_mask:0x8 bank_mask:0xf" for i in range(4)))
    W(s, *C["cschk"])

    if not T:
        th = I(f"""s_lshl_b32 {sT2}, {sCH}, 5
v_lshrrev_b32 {vTH}, 3, {vL16}
v_xor_b32 {vTH}, {sT2}, {vTH}
v_and_b32 {vTH}, 0x20, {vTH}
v_lshrrev_b32 {vFl}, 1, {vL16}
v_and_b32 {vFl}, 0x18, {vFl}
v_add_u32 {vTH}, {vTH}, {vFl}
v_and_b32 {vFl}, 0x3c0, {vL16}
v_add_u32 {vTH}, {vTH}, {vFl}""")
        assert x_last + 1 < 119
        W([th], x_last + 1)
    s = [I(f"s_lshl_b32 {sT2}, {sRB}, 13\nv_lshrrev_b32 {vW2}, 7, {vL16}\nv_lshl_add_u32 {vW2}, {vW2}, 10, {sT2}"),
         I(swz8(vFl) + f"v_add_u32 {vW2}, {vW2}, {vFl}")]
    a0 = max(p2_last, x_last + 1) + 1
    assert a0 + 2 < w2_first - 4
    W(s, a0, a0 + 2)

    if T:
        rd, mm = corr(ACC0, [(0, 0), (1, 16), (2, 32), (3, 48)])
        Kp = ACC1 + 16; tt = ACC1 + 24
        NISC = 0xbf317218
        vaddr = lambda d, tm, base: I(f"""s_lshl_b32 {sT2}, {sCH}, 6
v_xor_b32 v{d}, {sT2}, {vL16}
v_and_b32 v{d}, 0x60, v{d}
v_lshrrev_b32 v{tm}, 5, {vL16}
v_and_b32 v{tm}, 0x18, v{tm}
v_add_u32 v{d}, v{d}, v{tm}
v_and_b32 v{tm}, 0xf0, {vL16}
v_lshl_add_u32 v{d}, v{tm}, 3, v{d}
s_lshl_b32 {sT2}, {sRB}, 12
s_add_u32 {sT2}, {sT2}, {base:#x}
v_add_u32 v{d}, {sT2}, v{d}
v_xor_b32 v{d+1}, 32, v{d}""")
        kaddr = lambda d, tm, inc: I(f"""s_add_u32 {sT2}, {sRB}, {inc}
s_and_b32 {sT2}, {sT2}, 3
s_lshl_b32 {sT2}, {sT2}, 1
s_add_u32 {sT2}, {sT2}, {sCH}
s_lshl_b32 {sT2}, {sT2}, 10
s_add_u32 {sT2}, {sT2}, {K_OFF:#x}
v_and_b32 v{d}, 0x70, {vL16}
v_lshlrev_b32 v{d}, 1, v{d}
v_and_b32 v{tm}, 0x300, {vL16}
v_add3_u32 v{d}, v{d}, v{tm}, {sT2}""")
        s = rd + mm
        s += I(f"v_mul_f32 v{tt}, {NISC:#x}, {vC1[0]}\nv_mul_f32 v{tt+1}, {NISC:#x}, {vC1[1]}")
        s += [vaddr(tt+2, tt+3, V_OFF + 4096)]
        s += [kaddr(tt+4, tt+5, 1)]
        s += [I(f"""s_mov_b32 s94, 0xff00ff00
s_mov_b32 s95, 0xff00ff00
s_lshl_b32 {sT2}, {sR}, 3
s_add_u32 {sKV}, {sKV}, {sT2}
s_lshl_b32 {sKV}, {sKV}, 1
s_add_u32 {sKV}, {sKV}, {sCH}
s_lshl_b32 {sHF}, {sKV}, 7
s_lshl_b32 {sKV}, {sKV}, 12
s_add_u32 {sKV}, {sKV}, {KVH_OFF:#x}""")]
        s += [I(f"s_mov_b32 s36, s24\ns_mov_b32 s37, s25\ns_cmp_lg_u32 {sR}, 0\ns_cselect_b32 {sT2}, {WS_SIZE:#x}, 0\ns_and_b32 s38, {sT2}, s90\ns_mov_b32 s39, 0x20000")]
        def only_rb(val, body):
            l = newlab("rb")
            for x in body: x.cond = True
            return I(f"s_cmp_lg_u32 {sRB}, {val}\ns_cbranch_scc1 {l}") + body + I(f"{l}:")
        for f in (0, 1):
            for b in range(2):
                a = ACC0 + (2*f+b)*4
                s += [Ins(f"v_mul_f32 v{a+r}, v{tt+b}, v{a+r}") for r in range(4)]
                s += [Ins(f"v_cvt_pk_bf16_f32 v{Kp+(2*b+f)*2+i}, v{a+2*i}, v{a+2*i+1}") for i in range(2)]
        s += [I(f"s_mov_b64 exec, {sExK}") + I(f"ds_write_b128 v{tt+4}, {q(Kp)}\nds_write_b128 v{tt+4}, {q(Kp+4)} offset:16", tag="kvw") + I("s_mov_b64 exec, -1")]
        for f in (2, 3):
            for b in range(2):
                a = ACC0 + (2*f+b)*4; d = ACC0 + (2*b+f-2)*2
                s += [Ins(f"v_mul_f32 v{a+r}, v{tt+b}, v{a+r}") for r in range(4)]
                s += [Ins(f"v_cvt_pk_bf16_f32 v{d+i}, v{a+2*i}, v{a+2*i+1}") for i in range(2)]
                s += I(f"ds_write_b64 v{tt+f}, {q(d,2)} offset:{2048*b}", tag="kvw")
        s += [only_rb(3, I("\n".join(f"buffer_store_dwordx4 {q(r)}, {vL16}, {SWS}, {sKV} offen offset:{1024*i} sc1" for i, r in enumerate((Kp, Kp+4, ACC0, ACC0+4))), tag="hs"))]
        W(s, *C["kv"])
        fl = flag("hs", sHF, HF_OFF)[0]
        W([[fl[0]] + only_rb(3, fl[1:])], C["hflag"])
        Qp = ACC1 + 24
        rd, mm = corr(ACC1, [(0, 128), (1, 144)])
        s = rd + mm + [[]] * 3
        for f in (0, 1):
            for b in range(2):
                a = ACC1 + (2*f+b)*4
                s += [Ins(f"v_cvt_pk_bf16_f32 v{Qp+(2*b+f)*2+i}, v{a+2*i}, v{a+2*i+1}") for i in range(2)]
        W(s, *C["qepi"])
        hp = f"s_add_u32 {sT2}, {sHF}, {HF_OFF - 16*128:#x}\nv_mov_b32 v{TMP}, 0\nbuffer_load_dwordx2 {q(vP,2)}, v{TMP}, {SHL}, {sT2} offen sc1"
        W([only_rb(0, I(hp))], C["hpoll"])
        s = spin("halo", hp, f"v_cmp_ne_u64 vcc, {sN}, {q(vP,2)}\ns_cmp_lg_u32 s38, 0\ns_cselect_b64 vcc, vcc, 0")
        s += [only_rb(0, I(f"s_sub_u32 {sT2}, {sKV}, {16*4096}\n" + "\n".join(f"buffer_load_dwordx4 {q(ACC1+4*i)}, {vL16}, {SHL}, {sT2} offen offset:{1024*i} sc1" for i in range(4))))]
        W(s, C["hchk"], C["hchk"] + 2)
        B = 128
        bc, bp, Sc, Sp = B, B+4, B+8, B+24
        d0 = TMP; M01 = TMP+1; M23 = TMP+2; cqr = [TMP+3, TMP+4]; ta = TMP+5; tb = TMP+6; tc = TMP+7
        s = []
        s += [I(f"s_or_b32 {sT2}, {sR}, {sRB}\ns_cmp_eq_u32 {sT2}, 0\ns_cselect_b32 {sThr}, -100, -9")]
        s += I(f"v_bfe_u32 v{d0}, {vL16}, 4, 4\nv_lshrrev_b32 v{ta}, 8, {vL16}\nv_lshlrev_b32 v{ta}, 2, v{ta}\nv_sub_u32 v{d0}, v{d0}, v{ta}\nv_mov_b32 v{tb}, 0xff800000")
        for r in range(4):
            s += I(f"v_subrev_u32 v{ta}, {r}, v{d0}")
            s += [I(f"v_cmp_lt_u32 vcc, 7, v{ta}\nv_cmp_lt_i32 {sTmp2}, {sThr}, v{ta}\nv_ashrrev_i32 v{Sp+r}, 31, v{ta}\nv_cndmask_b32 v{bc+r}, 0, v{tb}, vcc\nv_cndmask_b32 v{bp+r}, 0, v{tb}, {sTmp2}")]
        s += I(f"v_bfi_b32 v{M01}, {sLo16}, v{Sp}, v{Sp+1}\nv_bfi_b32 v{M23}, {sLo16}, v{Sp+2}, v{Sp+3}")
        s += I(f"v_mul_f32 v{cqr[0]}, 0xbe800000, {vC1[0]}\nv_mul_f32 v{cqr[1]}, 0xbe800000, {vC1[1]}")
        for it in range(4): s.append(mf16(Sc+4*it, Kp+2*it, Qp+2*it, bc))
        s += [kaddr(ta, tb, 0)]
        s += [vaddr(tb, tc, V_OFF)]
        s += [I(f"s_and_b64 exec, {sEx0}, {sExK}") + I(f"ds_write_b128 v{ta}, {q(ACC1)}\nds_write_b128 v{ta}, {q(ACC1+4)} offset:16") + I(f"s_mov_b64 exec, {sEx0}") +
              I("\n".join(f"ds_write_b64 v{tb+hh}, {q(ACC1+8+(2*b+hh)*2,2)} offset:{2048*b}" for b in range(2) for hh in range(2))) + I("s_mov_b64 exec, -1")]
        s += I(f"ds_read_b128 {q(Kp)}, v{ta}\nds_read_b128 {q(Kp+4)}, v{ta} offset:16")
        s += [I(f"""s_lshl_b32 {sT2}, {sCH}, 6
v_lshrrev_b32 v{ta}, 2, {vL16}
v_xor_b32 v{ta}, {sT2}, v{ta}
v_and_b32 v{ta}, 0x60, v{ta}
v_lshrrev_b32 v{tb}, 1, {vL16}
v_and_b32 v{tb}, 0x18, v{tb}
v_add_u32 v{ta}, v{ta}, v{tb}
v_and_b32 v{tb}, 0x3c0, {vL16}
v_lshl_add_u32 v{ta}, v{tb}, 1, v{ta}
s_lshl_b32 {sT2}, {sRB}, 12
s_add_u32 {sT2}, {sT2}, {V_OFF:#x}
v_add_u32 v{ta}, {sT2}, v{ta}
v_xor_b32 v{tb}, 32, v{ta}""")]
        Vf = ACC1
        for it in range(4):
            b, hh = it >> 1, it & 1
            s += I(f"ds_read_b64_tr_b16 {q(Vf+4*it,2)}, v{ta+hh} offset:{2048*b}\nds_read_b64_tr_b16 {q(Vf+4*it+2,2)}, v{ta+hh} offset:{4096+2048*b}")
        mx = [bc, bc+1, bc+2, bc+3]
        for half in range(2):
            for k in range(2): s.append(mf16(Sp+4*k, Kp+2*(2*half+k), Qp+2*(2*half+k), bp))
            s += [[]] * 6
            for k in range(2):
                it = 2*half + k
                s += [Ins(f"v_max_f32 v{Sc+4*it+r}, v{Sc+4*it+r}, v{Sp+4*k+r}") for r in range(4)]
                s += I(f"v_max3_f32 v{mx[it]}, v{Sc+4*it}, v{Sc+4*it+1}, v{Sc+4*it+2}\nv_max_f32 v{mx[it]}, v{mx[it]}, v{Sc+4*it+3}")
        m0_, m1_, m2_, m3_ = mx
        s += I(f"""v_permlane32_swap_b32 v{m0_}, v{m1_}
v_permlane32_swap_b32 v{m2_}, v{m3_}
v_max_f32 v{m0_}, v{m0_}, v{m1_}
v_max_f32 v{m2_}, v{m2_}, v{m3_}
v_mov_b32 v{Sp}, 0x3f803f80
v_mov_b32 v{Sp+1}, 0x3f803f80
v_permlane16_swap_b32 v{m0_}, v{m2_}
v_max_f32 v{m0_}, v{m0_}, v{m2_}
v_mov_b32 v{m2_}, v{m0_}
v_mov_b32 v{Sp+2}, 0x3f803f80
v_mov_b32 v{Sp+3}, 0x3f803f80
v_permlane16_swap_b32 v{m0_}, v{m2_}
v_mov_b32 v{m1_}, v{m0_}
v_mov_b32 v{m3_}, v{m2_}""")
        s += [[]]
        s += I(f"v_permlane32_swap_b32 v{m0_}, v{m1_}\nv_permlane32_swap_b32 v{m2_}, v{m3_}")
        s += [Ins(f"v_mul_f32 v{mx[it]}, v{cqr[it>>1]}, v{mx[it]}") for it in range(4)]
        Ob = Kp
        for it in range(4):
            a = Sc + 4*it
            s += [Ins(f"v_fma_f32 v{a+r}, v{a+r}, v{cqr[it>>1]}, -v{mx[it]}") for r in range(4)]
            s += [Ins(f"v_exp_f32 v{a+r}, v{a+r}") for r in range(4)]
            s += I(f"v_cvt_pk_bf16_f32 v{bp}, v{a}, v{a+1}\nv_cvt_pk_bf16_f32 v{bp+1}, v{a+2}, v{a+3}")
            s += I(f"v_and_b32 v{a}, v{M01}, v{bp}\nv_and_b32 v{a+1}, v{M23}, v{bp+1}\nv_bfi_b32 v{a+2}, v{M01}, 0, v{bp}\nv_bfi_b32 v{a+3}, v{M23}, 0, v{bp+1}")
        for it in range(4): s.append(mf32(Ob+4*it, Vf+4*it, Sc+4*it, None))
        s += [[]] * 2
        for it in range(4): s.append(mf32(Vf+4*it, Sp, Sc+4*it, None))
        s += [[]] * 6
        s += [Ins(f"v_rcp_f32 v{Vf+4*it}, v{Vf+4*it}") for it in range(4)]
        for it in range(4):
            b, hh = it >> 1, it & 1
            s += [Ins(f"v_mul_f32 v{Ob+4*it+r}, v{Ob+4*it+r}, v{Vf+4*it}") for r in range(4)]
            s += [Ins(f"v_cvt_pk_bf16_f32 v{Sc+4*b+2*hh+i}, v{Ob+4*it+2*i}, v{Ob+4*it+2*i+1}") for i in range(2)]
            if hh: s += hstore(Sc+4*b, 12 + b, "e2")
        W(s, *C["att"])
        W(flag("e2", sFo, FL_OFF + 2*128), C["oflag"])
        last_c0, last_ev = 7, 4
    else:
        rd, it = ffn_epi(0, 0, "e0")
        W(rd + it, *C["epi1"])
        W(flag("e0", sFo, FL_OFF), C["aflag"])
        rd, mm = corr(ACC1, [(0, 128), (1, 144)])
        s = rd + mm + [[]] * 3
        for b in range(2):
            G = [ACC1+b*4+r for r in range(4)]; Uu = [ACC1+(2+b)*4+r for r in range(4)]
            s += silu(G, Uu, b)
            s += [Ins(f"v_cvt_pk_bf16_f32 v{ACC1+16+2*b+i}, v{Uu[2*i]}, v{Uu[2*i+1]}") for i in range(2)]
        s += [I(f"s_add_u32 {sT2}, {sHF}, {8*1024}") + I(f"buffer_store_dwordx4 {q(ACC1+16)}, {vL16}, {SWS}, {sT2} offen sc1", tag="e1")]
        W(s, *C["hepi"])
        W(flag("e1", sFo, FL_OFF + 128), C["hfl"])
        last_c0, last_ev = 5, 3

    s = [I(f"""s_and_b32 {sT2}, s2, 7
s_lshl_b32 {sT2}, {sT2}, 2
s_bfe_u32 {sAo}, s2, 0x20003
s_add_u32 {sT2}, {sT2}, {sAo}
s_lshl_b32 {sT2}, {sT2}, 1
s_add_u32 {sT2}, {sT2}, {sCH}
s_lshl_b32 {sOo}, {sT2}, 5
s_lshl_b32 {sT2}, {sT2}, 2
s_add_u32 {sT2}, {sT2}, {sRB}
s_mul_i32 {sAo}, {sT2}, {36*1024}
s_mul_i32 {sT2}, {sT2}, 640
s_add_u32 {sT2}, {sT2}, {FL_OFF:#x}
v_min_u32 {vFl}, 0x130, {vL16}
v_lshrrev_b32 {vT2}, 1, {vFl}
v_and_b32 {vT2}, 0x18, {vT2}
v_and_b32 {vFl}, 0x1c0, {vFl}
v_lshlrev_b32 {vFl}, 1, {vFl}
v_add3_u32 {vFl}, {vFl}, {vT2}, {sT2}""")]
    s += [I(f"s_lshr_b32 {sT2}, {sRB}, 1\ns_lshl_b32 {sT2}, {sT2}, 6") + lane_T(vTH, sT2, vT2) +
          I(f"s_lshl_b32 {sT2}, {sT2}, 7\nv_add_u32 {vTH}, {sT2}, {vTH}\ns_and_b32 {sT2}, {sRB}, 1\ns_lshl_b32 {sT2}, {sT2}, 10\nv_add_u32 {vTH}, {sT2}, {vTH}")]
    ap = max(186, a0 + 3)
    W(s, ap, ap + 4)
    rd, it = ffn_epi(2, last_c0, "el")
    W(rd, 312, 316)
    W(stamp(2) + [flat(it)] + stamp(40), 319)
    W(flag("el", sFo, FL_OFF + last_ev*128), C["lflag"])
    ra = ACC0 + 20
    red0 = [s_ for s_ in range(8) if all(slot[("w", n)] not in (s_, s_+1, s_+2) for n in range(20 + max(bars) - 40, 38)) and s_ <= 5]
    need_bar = not red0
    rbase = U(red0[0]) if red0 else 0
    s = [I(f"""s_and_b32 {sT2}, {sRB}, 1
s_add_u32 {sOo}, {sOo}, {sT2}
s_lshl_b32 {sOo}, {sOo}, 10
s_lshr_b32 {sT2}, s2, 5
s_lshl_b32 {sT2}, {sT2}, 7
s_add_u32 {sOo}, {sOo}, {sT2}
s_lshr_b32 {sT2}, {sRB}, 1
s_lshl_b32 {sT2}, {sT2}, 6
s_add_u32 {sOo}, {sOo}, {sT2}
v_and_b32 v{ra}, 0xf0, {vL16}
v_lshlrev_b32 v{ra}, 7, v{ra}
v_lshrrev_b32 v{ra+1}, 3, {vL16}
v_and_b32 v{ra+1}, 0x20, v{ra+1}
v_add_u32 v{ra}, v{ra}, v{ra+1}
v_lshrrev_b32 v{ra+1}, 9, {vL16}
v_lshl_add_u32 v{ra}, v{ra+1}, 4, v{ra}"""),
         I(f"buffer_load_dwordx4 {q(ACC0+16)}, v{ra}, {SX}, {sOo} offen")]
    s += [I(f"s_mul_i32 {sT2}, {sW}, 6144\ns_add_u32 {sT2}, {sT2}, {rbase}\nv_add_u32 v{ra+2}, {sT2}, {vL16}")]
    for rel in (1, 2, 3):
        s += [I(f"s_xor_b32 {sT2}, {sW}, {rel}\ns_mul_i32 {sT2}, {sT2}, 6144\ns_add_u32 {sT2}, {sT2}, {rbase}\nv_add_u32 v{ra+2+rel}, {sT2}, {vL16}")]
    W(s, 344, 356)
    xr = ACC0
    s = I(f"v_permlane16_swap_b32 v{ACC0+16}, v{ACC0+18}\nv_permlane16_swap_b32 v{ACC0+17}, v{ACC0+19}")
    for i in range(4):
        s += I(f"v_lshlrev_b32 v{xr+2*i}, 16, v{ACC0+16+i}\nv_and_b32 v{xr+2*i+1}, 0xffff0000, v{ACC0+16+i}")
    W(s, 440, 450)
    P += M[0]
    P += stamp(3)
    E = []
    if need_bar: E += [Ins("s_barrier")]
    for rel in (1, 2, 3):
        b, p = rel & 1, rel >> 1
        for tq in range(2):
            E += I(f"ds_write_b128 v{ra+2}, {q(ACC1+(2*(2*p+tq)+b)*4)} offset:{((rel-1)*2+tq)*1024}", tag="red")
    for tq in range(2):
        for r in range(4): E += I(f"v_add_f32 v{xr+4*tq+r}, v{xr+4*tq+r}, v{ACC1+8*tq+r}")
    E += [Wait("red"), Ins("s_barrier")]
    for rel in (1, 2, 3):
        for tq in range(2):
            E += I(f"ds_read_b128 {q(128+((rel-1)*2+tq)*4)}, v{ra+2+rel} offset:{((rel-1)*2+tq)*1024}")
    for rel in (1, 2, 3):
        for tq in range(2):
            for r in range(4): E += I(f"v_add_f32 v{xr+4*tq+r}, v{xr+4*tq+r}, v{128+((rel-1)*2+tq)*4+r}")
    for i in range(4):
        E += I(f"v_cvt_pk_bf16_f32 v{xr+8+i}, v{xr+2*i}, v{xr+2*i+1}")
    E += I(f"v_permlane16_swap_b32 v{xr+8}, v{xr+10}\nv_permlane16_swap_b32 v{xr+9}, v{xr+11}")
    E += I(f"buffer_store_dwordx4 {q(xr+8)}, v{ra}, {SOUT}, {sOo} offen {C['out_flags']}")
    P += E
    if C["stamps"]:
        P += stamp(41) + I("s_waitcnt vmcnt(0)") + stamp(4)
        P += I(f"""s_add_u32 s82, s82, {STAMP_OFF:#x}
s_addc_u32 s83, s83, 0
s_lshl_b32 {sT}, s2, 3
s_add_u32 {sT}, {sT}, {sW}
s_lshl_b32 {sT}, {sT}, 8
v_lshrrev_b32 v24, 2, {vL16}
v_add_u32 v24, {sT}, v24
global_store_dword v24, v0, s[82:83]""")
    P += I("s_endpgm")
    return P

def flat2(x): return [b for l in x for b in l]

def generate():
    global slow
    slow = []
    lab[0] = 0
    texts = []
    for ty in ("T", "F"):
        com = common_prologue()
        if CFG["stamps"]:
            k = [i for i, x in enumerate(com) if x.text.startswith("s_waitcnt lgkmcnt(0)")][0]
            com[k+1:k+1] = I(f"v_mov_b32 v0, 0\nv_writelane_b32 v0, {sN0}, 0")
        prog, st = finalize(com + flat(gen_type(ty)))
        prev = None
        for x in prog:
            if hasattr(x, "sid"):
                x.text = (f"v_writelane_b32 v0, s100, {prev}\n" if prev is not None else "") + "s_memrealtime s[100:101]"
                if x.sid in (41, 4, 1, 2): x.text += f"\ns_waitcnt lgkmcnt(0)\nv_writelane_b32 v0, s100, {x.sid}"; prev = None
                else: prev = x.sid
        lines = [x.text for x in prog]
        if ty == "F":
            k = lines.index("; SPLIT")
            lines = ["L_F:"] + lines[k+1:]
        texts.append("\n".join(lines))
        sys.stderr.write(f"type {ty}: {len(prog)} instrs, nop states {st}\n")
    hdr = open("cdna_kernels/" + KN + ".s.ref").read().split("; Override launch")[0]
    return hdr + f"""; bars={CFG["bars"]}
; @launch grid=(256,1,1) block=(512,1,1) lds=163840
.amdgcn_target "amdgcn-amd-amdhsa--gfx950"
.text
.globl {KN}_kernel
.p2align 8
.type {KN}_kernel,@function
{KN}_kernel:
""" + texts[0] + "\n" + texts[1] + "\n" + "\n".join(slow) + f"""
L_end:
s_endpgm
.section .rodata,"a"
.p2align 6
.amdhsa_kernel {KN}_kernel
  .amdhsa_next_free_vgpr 256
  .amdhsa_next_free_sgpr 102
  .amdhsa_accum_offset 256
  .amdhsa_group_segment_fixed_size 0
  .amdhsa_kernarg_size 80
  .amdhsa_user_sgpr_count 2
  .amdhsa_user_sgpr_kernarg_segment_ptr 1
  .amdhsa_system_sgpr_workgroup_id_x 1
  .amdhsa_float_denorm_mode_32 3
.end_amdhsa_kernel
"""

if __name__ == "__main__":
    out = sys.argv[1] if len(sys.argv) > 1 else "cdna_kernels/" + KN + ".s"
    for a in sys.argv[2:]:
        if a == "--stamps": CFG["stamps"] = True
        else:
            k, v = a.split("=", 1); CFG[k] = json.loads(v)
    open(out, "w").write(generate())
```

```python
import sys, json
from fw import *

KN = "parallel_sum__sliding_local_dilated__glu_gated_swiglu__prompt"
H_OFF, KVH_OFF, ST_OFF, CS_OFF, FL_OFF, HF_OFF, WS_SIZE = 0, 0xA00000, 0xB00000, 0xB10000, 0xC00000, 0xC40000, 0x1000000
STAMP_OFF = 128 << 20
OOR = 0x40000000
U = lambda n: n * 16384
MREG = U(8)
V_OFF = MREG
K_OFF = MREG + 20480
CT_OFF = MREG + 28672
SX, SP1, SPF, SW2, SWO, SWS, SOUT, SHS, SHL = [f"s[{4*i+4}:{4*i+7}]" for i in range(9)]
SCS = SHS
sN = "s[40:41]"; sN0, sN1 = "s40", "s41"
(sW, sRB, sCH, sR, sG, sCQ, sJ, sM, sMX, sXo, sC1, sC2, sC3, sW2o, sWOo, sT, sT2, sHo, sFo, sAo, sCSo, sSTo) = [f"s{i}" for i in range(42, 64)]
sDBG = "s[80:81]"
(sThr, sKV, sHF, sCnt, sOo, sPar) = [f"s{i}" for i in range(84, 90)]
sEx0 = "s[90:91]"; sE48 = "s[92:93]"; sExK = "s[94:95]"; sLo16 = "s96"; sCS5 = "s97"; sTmp2 = "s[98:99]"
sStr, sCSs, sCSm = "s70", "s71", "s3"
vL16, vT0, vT1, vWa, vWb, vCT, vCS = "v1", "v2", "v3", "v4", "v5", "v6", "v7"
vN0, vN1 = "v8", "v9"
vC1 = ["v10", "v11"]; vC2 = ["v12", "v13"]
vMn = [14, 16]
vXR0, vXR1, vX0, vX1 = "v18", "v19", "v20", "v21"
vT2, vT3, vTH, vFl = "v18", "v19", "v20", "v21"
vP = 22
TMP = 24
WF = [32, 48]
ACC1, ACC0 = 64, 96
X0 = 128
def q(r, n=4): return f"v[{r}:{r+n-1}]"
def XF(ks, b): return X0 + 8*ks + 4*b
LOG2E = 0x3fb8aa3b

CFG = dict(
    stamps=False, mimic=True,
    bars=[0,2,4,6,8,10,12,14,16,18,20,24,28,32,36,40,42,44,46,48,50,52,55],
    pace1=2.5, pace2=3.5, pace3=2.0, pace3_from=312, maxlead1=32,
    pre_units=2,
    cs_after=3,
    cspub=(66, 86),
    csld=112, cschk=(126, 136),
    epi1=(137, 190), kv=(137, 170), hflag=186, qepi=(194, 210), hpoll=212, hchk=224, att=(227, 284), oflag=302,
    aflag=212, hepi=(194, 226), hfl=248,
    p0=268, c0=282, p1=318, c1=324, lflag=336, p2=366, c2=380, p3=396, c3=408,
    out_flags="",
)

class DsAddr:
    def __init__(self, reg): self.reg = reg; self.bias = 0
    def at(self, target):
        pre = []
        if not (0 <= target - self.bias <= 65535):
            nb = target & ~0xffff
            pre = I(f"v_add_u32 {self.reg}, {(nb - self.bias) & 0xffffffff:#x}, {self.reg}")
            self.bias = nb
        return pre, target - self.bias

slow = []
lab = [0]
def newlab(p):
    lab[0] += 1
    return f"L_{p}{lab[0]}"
def stamp(i):
    if CFG.get("probe") == i:
        r = Ins(";raw"); r.text = "s_memrealtime s[100:101]"
        return [r]
    if not CFG["stamps"]: return []
    r = Ins(";raw")
    r.sid = i
    return [r]
SPIN_ID = {"nonce": 48, "cs": 49, "st": 51, "halo": 52, "p0": 53, "p1": 54, "p2": 55, "p3": 56}
def spin(name, reload_text, check_text):
    ls, lb, ll = newlab("slow"), newlab("back"), newlab("loop")
    body = finalize(I(f"s_waitcnt vmcnt(0) lgkmcnt(0)\ns_nop 7") + I(reload_text) + I(check_text))[0]
    slow.append(f"{ls}:\ns_mov_b32 {sCnt}, 0\n{ll}:\n" + "\n".join(x.text for x in body) +
                f"\ns_cbranch_vccz {lb}z\ns_add_u32 {sCnt}, {sCnt}, 1\ns_cmp_lt_u32 {sCnt}, 0x8000\ns_cbranch_scc1 {ll}\n{lb}z:\n" +
                (f"s_add_u32 {sCnt}, {sCnt}, 1\nv_writelane_b32 v0, {sCnt}, {SPIN_ID[name]}\n" if CFG["stamps"] else "") + f"s_nop 7\ns_branch {lb}")
    return [I(check_text) + I(f"s_cbranch_vccnz {ls}\n{lb}:")]

def mf32(d, a, b, c, anchor=False):
    return Ins(f"v_mfma_f32_16x16x32_bf16 {q(d)}, {q(a)}, {q(b)}, {q(c) if c is not None else 0}", anchor=anchor)
def mf16(d, a, b, c):
    return Ins(f"v_mfma_f32_16x16x16_bf16 {q(d)}, {q(a,2)}, {q(b,2)}, {q(c) if c is not None else 0}")

S2_SRC = [("w2", 2), ("w2", 4), ("w2", 6), ("wo", 0), ("wo", 1), ("w2", 3), ("w2", 5), ("w2", 0), ("w2", 1)]
AREG_BASE = [160, 168, 176, 184, 192, 200,   128, 136, 144, 152,   208, 216, 224, 232, 240, 248, 160, 168]

def swz8(tmp):
    return f"v_lshrrev_b32 {tmp}, 3, {vL16}\nv_and_b32 {tmp}, 0x60, {tmp}\nv_xor_b32 {tmp}, {tmp}, {vL16}\nv_and_b32 {tmp}, 0x70, {tmp}\n"
def lane_T(dst, st, tmp):
    return I(f"""
v_lshrrev_b32 {dst}, 2, {vL16}
v_xor_b32 {dst}, {st}, {dst}
v_and_b32 {dst}, 0x60, {dst}
v_lshrrev_b32 {tmp}, 1, {vL16}
v_and_b32 {tmp}, 0x18, {tmp}
v_add_u32 {dst}, {dst}, {tmp}
v_lshlrev_b32 {tmp}, 1, {vL16}
v_and_b32 {tmp}, 0x380, {tmp}
v_add_u32 {dst}, {dst}, {tmp}
v_lshrrev_b32 {tmp}, 9, {vL16}
v_lshl_add_u32 {dst}, {tmp}, 11, {dst}
""")
def srd(name, lo, size):
    b = int(name[2:name.index(":")])
    return I(f"s_mov_b32 s{b}, s{lo}\ns_and_b32 s{b+1}, s{lo+1}, 0xffff\ns_mov_b32 s{b+2}, {size:#x}\ns_mov_b32 s{b+3}, 0x20000")

def dma1(sm, lds, vo, srdn, sb, imm, tag):
    return I(f"s_add_u32 m0, {sm}, {lds:#x}\ns_add_u32 {sT}, {sb}, {imm:#x}") + I(f"buffer_load_dwordx4 {vo}, {srdn}, {sT} offen lds", tag=tag)

def common_prologue():
    P = I(f"""
s_cmp_ge_u32 s2, 256
s_cbranch_scc1 L_end
s_load_dwordx16 s[64:79], s[0:1], 0
s_load_dwordx4 s[80:83], s[0:1], 64
s_memrealtime {sN}
v_lshrrev_b32 v24, 6, v0
v_and_b32 {vL16}, 63, v0
v_readfirstlane_b32 {sW}, v24
v_lshlrev_b32 {vL16}, 4, {vL16}
s_and_b32 {sCQ}, s2, 3
s_bfe_u32 {sR}, s2, 0x10002
s_lshl_b32 {sR}, {sR}, 3
s_bfe_u32 {sT}, s2, 0x30003
s_add_u32 {sR}, {sR}, {sT}
s_lshr_b32 {sJ}, s2, 6
s_and_b32 {sPar}, {sCQ}, 1
s_and_b32 {sRB}, {sW}, 3
s_lshr_b32 {sCH}, {sW}, 2
s_lshl_b32 {sM}, {sW}, 11
s_lshl_b32 {sMX}, {sRB}, 12
s_lshl_b32 {sT}, {sCH}, 11
s_add_u32 {sMX}, {sMX}, {sT}
s_lshl_b32 {sHo}, {sR}, 2
s_add_u32 {sHo}, {sHo}, {sRB}
s_lshl_b32 {sXo}, {sHo}, 5
s_xor_b32 {sT}, {sCH}, {sPar}
s_add_u32 {sXo}, {sXo}, {sT}
s_lshl_b32 {sXo}, {sXo}, 10
v_lshrrev_b32 v24, 7, {vL16}
v_lshrrev_b32 v25, 4, {vL16}
v_and_b32 v25, 0x30, v25
v_xor_b32 v25, v25, {vL16}
v_and_b32 v25, 0x70, v25
v_lshl_add_u32 {vX0}, v24, 11, v25
v_xor_b32 {vX1}, 64, {vX0}
v_add_u32 {vX1}, 0x4000, {vX1}
s_and_b32 {sT}, {sRB}, 1
s_lshl_b32 {sT}, {sT}, 4
s_lshr_b32 {sT2}, {sRB}, 1
s_lshl_b32 {sT2}, {sT2}, 2
s_add_u32 {sT}, {sT}, {sT2}
v_lshrrev_b32 v26, 9, {vL16}
v_lshlrev_b32 v26, 3, v26
v_bfe_u32 v27, {vL16}, 7, 2
v_add3_u32 v26, v26, v27, {sT}
{swz8("v27")}s_mov_b32 s6, 0x200000
s_mov_b32 s7, 0x20000
s_mov_b32 s14, 0x1c0000
s_mov_b32 s15, 0x20000
s_cmp_eq_u32 {sCH}, 0
s_waitcnt lgkmcnt(0)
s_cselect_b32 s12, s72, s74
s_cselect_b32 s13, s73, s75
s_mov_b32 s4, s64
s_and_b32 s5, s65, 0xffff
s_and_b32 s13, s13, 0xffff
""")
    P += I(f"s_cmp_lt_u32 {sJ}, 2\ns_cbranch_scc0 L_F\n; SPLIT")
    return P

def stats_compute(t):
    red = lambda r: "\n".join([f"v_add_f32_dpp {r}, {r}, {r} row_shr:{d} row_mask:0xf bank_mask:0xf bound_ctrl:0" for d in (1,2,4,8)] +
                              [f"v_add_f32_dpp {r}, {r}, {r} row_bcast:15 row_mask:0xa bank_mask:0xf",
                               f"v_add_f32_dpp {r}, {r}, {r} row_bcast:31 row_mask:0xc bank_mask:0xf"])
    s = ""
    for i in range(4):
        s += f"v_lshlrev_b32 v{t+2*i}, 16, v{28+i}\nv_and_b32 v{t+2*i+1}, 0xffff0000, v{28+i}\n"
    s += f"v_add_f32 v24, v{t}, v{t+1}\nv_add_f32 v25, v{t+2}, v{t+3}\nv_add_f32 v26, v{t+4}, v{t+5}\nv_add_f32 v27, v{t+6}, v{t+7}\n"
    s += "v_add_f32 v24, v24, v25\nv_add_f32 v26, v26, v27\nv_add_f32 v24, v24, v26\n"
    s += red("v24") + "\nv_mul_f32 v24, 0x3b000000, v24\n"
    s += f"v_readlane_b32 {sThr}, v24, 63\n"
    for i in range(8): s += f"v_subrev_f32 v{t+i}, {sThr}, v{t+i}\n"
    s += f"v_mul_f32 v26, v{t}, v{t}\nv_mul_f32 v27, v{t+1}, v{t+1}\n"
    for i in range(2, 8): s += f"v_fmac_f32 v{26+(i&1)}, v{t+i}, v{t+i}\n"
    s += "v_add_f32 v26, v26, v27\n" + red("v26") + "\n"
    rnd = lambda r: f"v_cvt_pk_bf16_f32 {r}, {r}, {r}\nv_lshlrev_b32 {r}, 16, {r}\n"
    s += "v_mul_f32 v26, 0x3b000000, v26\n"
    if CFG["mimic"]: s += rnd("v26") + rnd("v24")
    s += "v_add_f32 v26, 0x3727c5ac, v26\n"
    if CFG["mimic"]: s += rnd("v26")
    s += "v_sqrt_f32 v26, v26\n"
    if CFG["mimic"]: s += rnd("v26")
    return I(s)

def first_k(u):
    kind, n = u
    if kind == "x" or n < 20: return 2*n, 2*n + 1
    return 40 + n - 20, 40 + n - 20
def banchor(k): return max(0, 8*(k-1))

def plan(ty):
    bars = CFG["bars"]
    order = []
    for h in range(8): order += [("x", h), ("w", h)]
    order += [("w", n) for n in range(8, 38)]
    free = {s: -1 for s in range(8)}
    extra = CFG.get("extra_" + ty)
    if extra: free[extra[0]] = extra[1]
    slot = {}; earliest = {}; vis = {}
    for u in order:
        s = min(free, key=lambda s: (free[s], s))
        assert free[s] < 999, ("no slot", u)
        slot[u] = s; earliest[u] = free[s]
        f, l = first_k(u)
        vis[u] = max(b for b in bars if b <= f)
        rel = [b for b in bars if b > l]
        free[s] = rel[0] if rel else 999
    return order, slot, earliest, vis

def build_main(ty, slot, vis, extra_tags):
    aT = [DsAddr(vT0), DsAddr(vT1), DsAddr(vT2), DsAddr(vT3)]
    aH = DsAddr(vTH); aX = [DsAddr(vXR0), DsAddr(vXR1)]
    ks = []
    def trpair(a, dst, t0, de, tag):
        out = []
        for e in range(2):
            pre, off = a.at(t0 + e*de)
            out.append(pre + I(f"ds_read_b64_tr_b16 {q(dst+2*e,2)}, {a.reg} offset:{off}", tag=tag))
        return out
    for k in range(40):
        n, s = k >> 1, k & 1
        wf = WF[k & 1]; tag = f"r{k}"; base = U(slot[("w", n)])
        if n < 8 or n >= 12:
            kk = k if n < 8 else k - 24
            def rd(n=n, s=s, wf=wf, tag=tag, kk=kk, base=base):
                r = []
                if n < 8:
                    for b in range(2):
                        pre, off = aX[s].at(U(slot[("x", n)]) + 2048*b)
                        r.append(pre + I(f"ds_read_b128 {q(XF(kk,b))}, {aX[s].reg} offset:{off}", tag=tag))
                for f in range(4):
                    r += trpair(aT[f&1], wf+4*f, base + (f>>1)*8192 + s*1024, 4096, tag)
                return r
            mf = [mf32(ACC0+(2*f+b)*4, wf+4*f, XF(kk,b), None if kk == 0 else ACC0+(2*f+b)*4, True) for f in range(4) for b in range(2)]
        else:
            def rd(s=s, wf=wf, tag=tag, base=base):
                r = []
                for h in range(2):
                    for f in range(2):
                        if ty == "T": r += trpair(aT[f], wf+8*h+4*f, base + s*8192 + h*1024, 4096, tag)
                        else:         r += trpair(aH, wf+8*h+4*f, base + f*8192 + s*4096 + h*1024, 2048, tag)
                return r
            mf = []
            for h in range(2):
                kk = 4*(n-8) + 2*s + h
                mf += [mf32(ACC1+(2*f+b)*4, wf+8*h+4*f, XF(kk,b), None if kk == 0 else ACC1+(2*f+b)*4, True) for f in range(2) for b in range(2)]
        ks.append((rd, mf))
    for t in range(18):
        k = 40 + t; wf = WF[k & 1]; tag = f"r{k}"; base = U(slot[("w", 20+t)])
        def rd(wf=wf, tag=tag, t=t, base=base):
            r = []
            if t == 0:
                for a in aT: a.bias = 0
                r.append(I(f"v_mov_b32 {vT0}, {vTH}\nv_xor_b32 {vT1}, 32, {vTH}\nv_xor_b32 {vT2}, 64, {vTH}\nv_xor_b32 {vT3}, 0x60, {vTH}"))
            for f in range(4):
                r += trpair(aT[f], wf+4*f, base, 4096, tag)
            return r
        A = AREG_BASE[t]
        mf = [mf32(ACC1+(2*f+b)*4, wf+4*f, A+4*b, None if t == 0 else ACC1+(2*f+b)*4, True) for f in range(4) for b in range(2)]
        if t in (4, 5):
            mf[0] = [I(f"v_swap_b32 v{A+2}, v{A+4}\nv_swap_b32 v{A+3}, v{A+5}"), mf[0]]
        ks.append((rd, mf))
    def barrier(k):
        if k not in CFG["bars"]: return []
        tags = [f"{u[0]}{u[1]}" for u in vis if vis[u] == k] + [f"r{k-1}"] + extra_tags.get(k, [])
        w = Wait(*tags); w.fence = True
        return [w, Ins("s_barrier")] + stamp(5 + CFG["bars"].index(k))
    main = barrier(0) + flat(ks[0][0]())
    for i, (rd0, mfs) in enumerate(ks):
        rd = []
        if i + 1 < len(ks):
            main += barrier(i + 1)
            rd = ks[i+1][0]()
        for m in mfs:
            main += flat([m])
            main += flat(rd[:2]); rd = rd[2:]
        assert not rd
    return main

def corr(acc, tiles, gap=3):
    it = []
    for n, (f, off) in enumerate(tiles):
        it += I(f"ds_read2_b32 {q(TMP+2*n,2)}, {vCT} offset0:{off} offset1:{off}")
    it += [[]] * gap
    m = []
    for b in range(2):
        for n, (f, off) in enumerate(tiles):
            d = acc + (2*f+b)*4
            m.append(mf16(d, TMP+2*n, vMn[b], d))
    return it, m

def silu(G, Uu, b):
    it = []
    for A, B in [(G[i:i+4], Uu[i:i+4]) for i in range(0, len(G), 4)]:
        it += [Ins(f"v_mul_f32 v{u}, v{g}, v{u}") for g, u in zip(A, B)]
        it += [Ins(f"v_mul_f32 v{g}, {vC1[b]}, v{g}") for g in A]
        it += [Ins(f"v_exp_f32 v{g}, v{g}") for g in A]
        it += [Ins(f"v_fma_f32 v{g}, v{g}, {vC2[b]}, {vC2[b]}") for g in A]
        it += [Ins(f"v_rcp_f32 v{g}, v{g}") for g in A]
        it += [Ins(f"v_mul_f32 v{u}, v{u}, v{g}") for g, u in zip(A, B)]
    return it
def hstore(reg, piece, tag):
    return [I(f"s_add_u32 {sT2}, {sHo}, {piece*1024:#x}") + I(f"buffer_store_dwordx4 {q(reg)}, {vL16}, {SWS}, {sT2} offen sc1", tag=tag)]
def flag(tag, sbase, imm, srdname=SWS):
    return [[Wait(tag)] + I(f"s_add_u32 {sT2}, {sbase}, {imm:#x}\ns_mov_b64 exec, 1\nbuffer_store_dwordx2 v[8:9], {vL16}, {srdname}, {sT2} offen sc1\ns_mov_b64 exec, -1")]
def ffn_epi(u0, c0, tag):
    rd, m = corr(ACC0, [(0, u0*32), (1, u0*32+16), (2, u0*32+32), (3, u0*32+48)])
    it = m + [[]] * 2
    for b in range(2):
        G = [ACC0+(2*f+b)*4+r for f in (0,1) for r in range(4)]
        Uu = [ACC0+(2*f+b)*4+r for f in (2,3) for r in range(4)]
        it += silu(G, Uu, b)
        d = ACC0 + b*4
        it += [Ins(f"v_cvt_pk_bf16_f32 v{d+i}, v{Uu[2*i]}, v{Uu[2*i+1]}") for i in range(4)]
        it += hstore(d, 4*c0 + b, tag)
    return rd, it

def gen_type(ty):
    C = CFG
    P = []
    T = ty == "T"
    order, slot, earliest, vis = plan(ty)
    if T:
        P += srd(SP1, 66, 0x180000)
        P += I(f"""
s_lshl_b32 {sT}, {sCQ}, 1
s_add_u32 {sKV}, {sT}, {sJ}
s_lshl_b32 {sC2}, {sKV}, 7
s_lshl_b32 {sT}, {sCH}, 10
s_add_u32 {sC1}, {sC2}, {sT}
s_add_u32 {sC1}, {sC1}, 1024
v_mul_u32_u24 {vWa}, 3072, v26
v_add_u32 {vWa}, {vWa}, v27
""")
        st1 = 3072; S1 = SP1; v3 = vWb; v2 = vWa
    else:
        P += I(f"""
s_mul_i32 {sT}, {sCQ}, 7
s_lshl_b32 {sT2}, {sJ}, 1
s_add_u32 {sC1}, {sT}, {sT2}
s_sub_u32 {sC1}, {sC1}, 2
s_lshl_b32 {sC1}, {sC1}, 7
v_mul_u32_u24 {vWa}, 3584, v26
v_add_u32 {vWa}, {vWa}, v27
""")
        st1 = 3584; S1 = SPF; v3 = vWa; v2 = vWb
    vW2 = v2
    def unit_dma(u):
        kind, n = u; tag = f"{kind}{n}"; base = U(slot[u])
        if kind == "x":
            return [dma1(sMX, base + 1024*i, (vX0, vX1)[i], SX, sXo, 128*n, tag) for i in range(2)]
        out = []
        for i in range(2):
            if n < 8:    a = (vWa, S1, sC1, (64*n + 32*i) * st1)
            elif n < 12: a = (v2, SP1 if T else SPF, sC2, (128*(n-8) + 32*i) * (3072 if T else 3584))
            elif n < 20: a = (v3, SPF, sC3, (64*(n-12) + 32*i) * 3584)
            else:
                t = n - 20; kd, uu = S2_SRC[t >> 1]
                if kd == "w2": a = (vW2, SW2, sW2o, ((7*i + uu) * 64 + 32*(t&1)) * 1024)
                else:          a = (vW2, SWO, sWOo, ((2*i + uu) * 64 + 32*(t&1)) * 1024)
            out.append(dma1(sM, base + 1024*i, a[0], a[1], a[2], a[3], tag))
        return out
    P += flat(unit_dma(("x", 0)) + unit_dma(("w", 0)))
    if T:
        P += I(f"s_or_b32 {sT}, s2, {sW}\ns_cmp_lg_u32 {sT}, 0\ns_cbranch_scc1 L_nonon")
        P += I(f"s_or_b32 {sN0}, {sN0}, 1\nv_mov_b32 v28, {sN0}\nv_mov_b32 v29, {sN1}\ns_mov_b64 exec, 1\nglobal_store_dwordx2 {vL16}, v[28:29], {sDBG} sc1\ns_mov_b64 exec, -1", cond=True)
        P += I("L_nonon:")
    P += I(f"s_lshl_b32 {sT}, {sCH}, 6") + lane_T(vT0, sT, "v24") + I(f"v_xor_b32 {vT1}, 32, {vT0}")
    P += I(f"""
v_lshrrev_b32 v24, 8, {vL16}
v_bfe_u32 v25, {vL16}, 5, 3
v_xor_b32 v24, v24, v25
v_lshlrev_b32 v24, 4, v24
v_and_b32 v25, 0xf0, {vL16}
v_lshl_add_u32 v24, v25, 3, v24
s_lshl_b32 {sT}, {sRB}, 12
v_add_u32 {vXR0}, {sT}, v24
v_xor_b32 {vXR1}, 64, {vXR0}
""")
    if T:
        P += I(f"""
v_mul_u32_u24 {vWb}, 3584, v26
v_add_u32 {vWb}, {vWb}, v27
s_mul_i32 {sC3}, {sCQ}, 7
s_add_u32 {sC3}, {sC3}, {sJ}
s_lshl_b32 {sC3}, {sC3}, 7
s_mul_i32 {sT}, {sCH}, {64*3072}
s_add_u32 {sC2}, {sC2}, {sT}
""")
    else:
        P += I(f"""
s_add_u32 {sC3}, {sC1}, 128
s_mul_i32 {sC2}, {sCQ}, 896
s_lshl_b32 {sT}, {sJ}, 6
s_add_u32 {sC2}, {sC2}, {sT}
s_add_u32 {sC2}, {sC2}, 640
s_lshr_b32 {sT}, {sRB}, 1
s_lshl_b32 {sT}, {sT}, 6
s_and_b32 {sT2}, {sRB}, 1
s_lshl_b32 {sT2}, {sT2}, 2
s_add_u32 {sT}, {sT}, {sT2}
v_lshrrev_b32 {vWb}, 8, {vL16}
v_lshlrev_b32 {vWb}, 3, {vWb}
v_bfe_u32 v24, {vL16}, 6, 2
v_add3_u32 {vWb}, {vWb}, v24, {sT}
v_mul_u32_u24 {vWb}, 3584, {vWb}
v_lshrrev_b32 v24, 3, {vL16}
v_and_b32 v24, 0x20, v24
v_xor_b32 v24, v24, {vL16}
v_and_b32 v24, 0x30, v24
v_add_u32 {vWb}, {vWb}, v24
""")
    P += I(f"""
s_lshl_b32 {sT}, {sJ}, 4
s_add_u32 {sT}, {sT}, {sR}
s_mul_i32 {sT2}, {sT}, 205
s_lshr_b32 {sT2}, {sT2}, 12
s_mul_i32 {sAo}, {sT2}, 20
s_sub_u32 {sT}, {sT}, {sAo}
s_mul_i32 {sCSo}, {sCQ}, 60
s_add_u32 {sAo}, {sAo}, {sCSo}
s_add_u32 {sAo}, {sAo}, {sT}
s_lshl_b32 {sAo}, {sAo}, 2
s_add_u32 {sAo}, {sAo}, {sRB}
s_lshl_b32 {sAo}, {sAo}, 7
s_add_u32 {sAo}, {sAo}, {CS_OFF:#x}
s_cmp_ge_u32 {sT2}, 3
s_cselect_b32 {sAo}, {OOR:#x}, {sAo}
s_cmp_lg_u32 {sCH}, 0
s_cselect_b32 {sAo}, {OOR:#x}, {sAo}
s_mul_i32 {sT2}, {sT2}, 192
s_lshl_b32 {sFo}, {sW}, 3
s_add_u32 {sT2}, {sT2}, {sFo}
s_mul_i32 {sFo}, {sCQ}, 7
s_add_u32 {sFo}, {sFo}, {sT}
s_cmp_lt_u32 {sT}, 13
s_cselect_b32 s32, s72, s74
s_cselect_b32 s33, s73, s75
s_cselect_b32 {sG}, 6, 13
s_sub_u32 {sFo}, {sFo}, {sG}
s_lshr_b32 {sG}, {sT}, 1
s_lshl_b32 {sG}, {sG}, 3
s_and_b32 {sOo}, {sT}, 1
s_add_u32 {sG}, {sG}, {sOo}
s_lshl_b32 {sOo}, {sCQ}, 1
s_add_u32 {sG}, {sG}, {sOo}
s_cmp_lt_u32 {sT}, 6
s_cselect_b32 s32, s66, s32
s_cselect_b32 s33, s67, s33
s_cselect_b32 {sFo}, {sG}, {sFo}
s_cselect_b32 {sStr}, 3072, 3584
s_and_b32 s33, s33, 0xffff
s_lshl_b32 s34, {sStr}, 9
s_mov_b32 s35, 0x20000
s_lshl_b32 {sFo}, {sFo}, 7
s_mul_i32 {sT2}, {sT2}, {sStr}
s_add_u32 {sCSs}, {sT2}, {sFo}
v_lshrrev_b32 v24, 7, {vL16}
v_mad_u32_u24 {vCS}, v24, {sStr}, v27
s_lshl_b32 {sStr}, {sStr}, 6
s_lshl_b32 {sCSm}, {sRB}, 11
s_lshl_b32 {sT}, {sCH}, 10
s_add_u32 {sCSm}, {sCSm}, {sT}
s_lshl_b32 {sG}, {sCQ}, 2
s_add_u32 {sG}, {sG}, {sJ}
s_lshl_b32 {sT2}, {sR}, 4
s_add_u32 {sT2}, {sT2}, {sG}
s_lshl_b32 {sT2}, {sT2}, 3
s_add_u32 {sOo}, {sT2}, {sW}
v_mov_b32 v22, 0
""".replace("s_cselect_b32 s70, 3072, 3584", "s_movk_i32 s70, 3584\ns_cselect_b32 s70, 3072, s70"))
    for h in range(1, C["pre_units"]):
        P += flat(unit_dma(("x", h)) + unit_dma(("w", h)))
    P += stamp(1)

    bars = C["bars"]
    nb = lambda a: min(b for b in bars if banchor(b) >= a)
    pb = lambda a: max(b for b in bars if banchor(b) <= a)
    extra = {}
    extra.setdefault(pb(C["cspub"][0]), []).append("cs")
    extra.setdefault(nb(C["cspub"][1]), []).append("csr")
    extra.setdefault(nb(C["cschk"][1]), []).append("ct")
    assert banchor(nb(C["cschk"][1])) <= C["epi1"][0]
    if T: extra.setdefault(nb(C["kv"][1]), []).append("kvw")
    main = build_main(ty, slot, vis, extra)
    M = [main]
    def W(side, a0, a1=None):
        M[0] = weave(M[0], side, a0, a1 if a1 is not None else a0 + 1)

    s = [srd(SWS, 82, WS_SIZE), srd(SW2, 76, 0x1c0000), srd(SWO, 68, 0x80000), srd(SOUT, 78, 0x200000)]
    s += [I(f"""
s_lshl_b32 {sSTo}, {sHo}, 9
s_add_u32 {sSTo}, {sSTo}, {ST_OFF:#x}
s_lshl_b32 {sHo}, {sHo}, 2
s_add_u32 {sHo}, {sHo}, {sCQ}
s_mul_i32 {sFo}, {sHo}, 640
s_and_b32 {sT}, {sJ}, 1
s_lshl_b32 {sT}, {sT}, 1
s_add_u32 {sT}, {sT}, {sCH}
s_lshl_b32 {sT2}, {sT}, 3
s_add_u32 {sFo}, {sFo}, {sT2}
s_mul_i32 {sHo}, {sHo}, {36*1024}
s_lshl_b32 {sT2}, {sT}, 10
s_add_u32 {sHF}, {sHo}, {sT2}
s_lshl_b32 {sT2}, {sT}, 11
s_add_u32 {sHo}, {sHo}, {sT2}
"""), I(f"""
s_lshr_b32 {sT}, s2, 5
s_lshl_b32 {sT}, {sT}, 7
s_mul_i32 {sW2o}, {sCH}, {14*64*1024}
s_add_u32 {sW2o}, {sW2o}, {sT}
s_lshl_b32 {sWOo}, {sCH}, 18
s_add_u32 {sWOo}, {sWOo}, {sT}
s_cmp_eq_u32 {sRB}, 0
s_cselect_b64 {sEx0}, -1, 0
s_mov_b32 s92, -1
s_mov_b32 s93, 0xffff
s_mov_b32 {sLo16}, 0xffff
""")]
    if T:
        s += [I(f"""
s_lshl_b32 {sT}, {sRB}, 1
s_add_u32 {sT}, {sT}, 2
s_cmp_eq_u32 {sRB}, 3
s_cselect_b32 {sT}, 13, {sT}
s_add_u32 {sCSo}, {sCSo}, {sJ}
s_lshl_b32 {sCSo}, {sCSo}, 1
s_add_u32 {sCSo}, {sCSo}, {sCH}
s_lshl_b32 {sCSo}, {sCSo}, 8
s_add_u32 {sCS5}, {sCSo}, {CS_OFF:#x}
s_lshl_b32 {sT}, {sT}, 9
s_add_u32 {sCSo}, {sCS5}, {sT}
""")]
    else:
        s += [I(f"""
s_and_b32 {sT}, {sRB}, 1
s_mul_i32 {sT}, {sT}, 7
s_lshr_b32 {sT2}, {sRB}, 1
s_add_u32 {sT}, {sT}, {sT2}
s_lshl_b32 {sT2}, {sJ}, 1
s_add_u32 {sT}, {sT}, {sT2}
s_add_u32 {sT}, {sT}, 4
s_add_u32 {sT}, {sT}, {sCSo}
s_lshl_b32 {sT}, {sT}, 1
s_add_u32 {sT}, {sT}, {sCH}
s_lshl_b32 {sT}, {sT}, 8
s_lshl_b32 {sCS5}, {sCSo}, 2
s_add_u32 {sCS5}, {sCS5}, {sT2}
s_add_u32 {sCS5}, {sCS5}, {sCH}
s_lshl_b32 {sCS5}, {sCS5}, 7
s_add_u32 {sCS5}, {sCS5}, {CS_OFF + 12*512 - 512:#x}
s_add_u32 {sCSo}, {sT}, {CS_OFF:#x}
""")]
    W(s, 0, 8)

    nonce_ld = f"global_load_dwordx2 v[8:9], v22, {sDBG} sc1"
    c1r, c5r, str_ = ACC1 + 16, ACC1 + 20, TMP + 4
    v5 = vCS if T else f"v{TMP}"
    cs_ld = (f"buffer_load_dwordx4 {q(c1r)}, {vCS}, {SWS}, {sCSo} offen sc1\nbuffer_load_dwordx4 {q(c5r)}, {v5}, {SWS}, {sCS5} offen sc1\n"
             f"buffer_load_dwordx4 {q(str_)}, v23, {SWS}, {sSTo} offen sc1")
    poll = f"buffer_load_dwordx2 {q(vP,2)}, {vFl}, {SWS}, 0 offen sc1"
    chk = lambda mask: f"v_cmp_ne_u64 vcc, {sN}, {q(vP,2)}\ns_and_b64 vcc, vcc, {mask:#x}"
    def aload(t):
        A = AREG_BASE[t]
        return [I(f"s_add_u32 {sT2}, {sAo}, {2048*t + 1024*b}\nbuffer_load_dwordx4 {q(A+4*b)}, {vL16}, {SWS}, {sT2} offen sc1") for b in range(2)]
    timed = []
    def TM(a, dl, bundles, cost=1):
        for b in bundles: timed.append([a, dl, b, cost, None])
    def AL(a, t0, t1):
        for t in range(t0, t1): TM(a, 320 + 8*t, aload(t))
    TM(C["csld"], 0, [[x] for x in I(cs_ld)])
    TM(C["p0"], 0, [I(poll)]); TM(C["c0"], 0, spin("p0", poll, chk(0xff)), 0); AL(C["c0"], 0, 6)
    TM(C["p1"], 0, [I(poll)]); TM(C["c1"], 0, spin("p1", poll, chk(0xf00)), 0); AL(C["c1"], 6, 10)
    TM(C["p2"], 0, [I(poll)]); TM(C["c2"], 0, spin("p2", poll, chk(0xf000)), 0); AL(C["c2"], 10, 14)
    TM(C["p3"], 0, [I(poll)]); TM(C["c3"], 0, spin("p3", poll, chk(0xf0000)), 0); AL(C["c3"], 14, 18)
    q_units = []
    for u in order:
        if u[1] < C["pre_units"] and (u[0] == "x" or u[1] < 8): continue
        half = (not T) and u[0] == "w" and 8 <= u[1] < 12
        e = banchor(earliest[u]) if earliest[u] >= 0 else 0
        dl = banchor(vis[u])
        if u[1] < 9: e = max(e, dl - C["maxlead1"])
        for b in unit_dma(u):
            q_units.append([e, dl, b, 2 if half else 1, u])
        if u == ("w", C["cs_after"]):
            for n in range(3):
                q_units.append([0, dl, I(f"s_add_u32 m0, {sCSm}, {MREG + 8192*n:#x}\ns_nop 0") + I(f"buffer_load_dwordx4 {vCS}, {SCS}, {sCSs} offen lds", tag="cs") + I(f"s_add_u32 {sCSs}, {sCSs}, {sStr}"), 1, ("cs", 0)])
            q_units.append([0, dl, I(f"s_lshl_b32 {sT2}, {sOo}, 10\nbuffer_load_dwordx4 v[28:31], {vL16}, {SX}, {sT2} offen"), 1, None])
            q_units.append([0, dl, I(nonce_ld), 1, ("cs", 0)])
    vis[("cs", 0)] = pb(C["cspub"][0])
    t = 0.0
    last_issue = {}
    alog = []
    while timed or q_units:
        heads = [qq for qq in (timed, q_units) if qq]
        t = max(t, min(qq[0][0] for qq in heads))
        av = [qq for qq in heads if qq[0][0] <= t]
        qq = min(av, key=lambda z: z[0][1])
        a, dl, b, cost, u = qq.pop(0)
        an = min(int(t), 463)
        W([b], an)
        if u: last_issue[u] = an
        elif dl >= 320: alog.append(dl - an)
        pace = C["pace1"] if t < 128 else C["pace2"] if t < C["pace3_from"] else C["pace3"]
        t += pace * cost
    sys.stderr.write(f"{ty} A-load slack: {alog}\n")
    assert min(alog) > 0
    sys.stderr.write(f"{ty} slack(anchors from last issue to visibility barrier): " + " ".join(f"{u[0]}{u[1]}:{banchor(vis[u]) - last_issue[u]}" for u in last_issue) + "\n")
    assert all(banchor(vis[u]) > last_issue[u] for u in last_issue)
    w2_first = min(a for u, a in last_issue.items() if u == ("w", 20)); p2_last = last_issue[("w", 11)]; x_last = last_issue[("x", 7)]

    tq_ = 224
    s = [I(f"s_lshl_b32 {sT2}, {sRB}, 5") + lane_T(f"v{tq_}", sT2, f"v{tq_+1}")]
    s += I(f"v_add_u32 v{tq_}, {MREG:#x}, v{tq_}")
    fr = ACC1
    for f in range(6):
        for e in range(2): s += I(f"ds_read_b64_tr_b16 {q(fr+4*f+2*e,2)}, v{tq_} offset:{8192*(f>>1) + 1024*(f&1) + 4096*e}", tag="csr")
    s += I("\n".join(f"v_mov_b32 v{tq_+4+i}, 0x3f803f80" for i in range(4)))
    s += I(f"v_lshrrev_b32 v{tq_+1}, 1, {vL16}\nv_mov_b32 v{tq_+2}, {OOR:#x}")
    s += I(f"v_mov_b32_dpp v{tq_+1}, v{tq_+2} quad_perm:[0,1,2,3] row_mask:0xe bank_mask:0xf")
    for f in range(6): s.append(mf32(tq_+8, tq_+4, fr+4*f, tq_+8 if f else None))
    s += spin("nonce", nonce_ld, f"v_cmp_eq_u32 vcc, 0, {vN0}")
    s += I(f"v_readfirstlane_b32 {sN0}, {vN0}\nv_readfirstlane_b32 {sN1}, {vN1}")
    sc = stats_compute(tq_ + 16)
    s += sc[:12]
    s += I(f"v_mov_b32 v{tq_+9}, {vN0}")
    s += I(f"buffer_store_dwordx2 {q(tq_+8,2)}, v{tq_+1}, {SWS}, {sAo} offen sc1")
    s += sc[12:]
    s += I(f"v_mov_b32 v25, {vN0}\nv_mov_b32 v27, {vN0}")
    s += [I(f"s_lshl_b32 {sT2}, {sOo}, 4\ns_add_u32 {sT2}, {sT2}, {ST_OFF:#x}\ns_mov_b32 exec_lo, 0\ns_mov_b32 exec_hi, 0x80000000\nbuffer_store_dwordx4 v[24:27], v22, {SWS}, {sT2} offen sc1\ns_mov_b64 exec, -1")]
    W(s, *C["cspub"])
    assert C["cspub"][1] <= 88
    s = I(f"""v_lshrrev_b32 v{TMP+1}, 8, {vL16}
v_and_b32 {vCS}, 0xf0, {vL16}
v_mov_b32 v{TMP+2}, {OOR:#x}
v_mul_u32_u24 v{TMP}, 10240, v{TMP+1}
v_add_u32 {vCS}, {vCS}, v{TMP}
v_min_u32 v{TMP}, 2, v{TMP+1}
v_mul_u32_u24 v{TMP}, 1280, v{TMP}
v_mov_b32_dpp {vCS}, v{TMP+2} quad_perm:[0,1,2,3] row_mask:0x8 bank_mask:0xf
v_bfe_u32 {vCT}, {vL16}, 4, 4
v_lshl_add_u32 {vCT}, {vCT}, 2, v{TMP}""")
    s += [I(f"s_mul_i32 {sT2}, {sCH}, 640\ns_add_u32 {sT2}, {sT2}, {CT_OFF:#x}\nv_add_u32 {vCT}, {sT2}, {vCT}")]
    s += I(f"v_xor_b32 v{TMP+1}, {sPar}, v{TMP+1}\nv_and_b32 v{TMP+1}, 1, v{TMP+1}\nv_lshlrev_b32 v{TMP+1}, 4, v{TMP+1}\nv_and_b32 v23, 0xf0, {vL16}\nv_lshl_add_u32 v23, v23, 1, v{TMP+1}")
    if not T:
        s += I(f"v_bfe_u32 v{TMP}, {vL16}, 7, 1\nv_mul_u32_u24 v{TMP}, {7*512-128}, v{TMP}\nv_add_u32 v{TMP}, v{TMP}, {vCS}")
    W(s, C["cspub"][1] + 4, C["csld"] - 1)
    MX = vC2[1]
    chk_cs = (f"v_min3_u32 v{vP}, v{c1r+1}, v{c1r+3}, v{c5r+1}\nv_max3_u32 {MX}, v{c1r+1}, v{c1r+3}, v{c5r+1}\n"
              f"v_min3_u32 v{vP}, v{vP}, v{c5r+3}, v{str_+1}\nv_max3_u32 {MX}, {MX}, v{c5r+3}, v{str_+1}\n"
              f"v_min3_u32 v{vP}, v{vP}, v{str_+3}, {vN0}\nv_max3_u32 {MX}, {MX}, v{str_+3}, {vN0}\n"
              f"v_cmp_ne_u32 vcc, v{vP}, {MX}\ns_and_b64 vcc, vcc, {sE48}")
    s = spin("cs", cs_ld, chk_cs)
    for a in (c1r, c5r):
        s += I(f"""v_cvt_pk_bf16_f32 v{a+1}, v{a}, v{a+2}
v_and_b32 v{a+3}, 0xffff0000, v{a+1}
v_lshlrev_b32 v{a+1}, 16, v{a+1}
v_sub_f32 v{a+3}, v{a+2}, v{a+3}
v_sub_f32 v{a+1}, v{a}, v{a+1}
v_cvt_pk_bf16_f32 v{a}, v{a}, v{a+1}
v_cvt_pk_bf16_f32 v{a+1}, v{a+2}, v{a+3}""")
    wa = ACC1 + 24
    s += I(f"v_bfe_u32 v{wa}, {vL16}, 4, 4\nv_lshl_add_u32 v{wa}, v{wa}, 2, {vCT}")
    s += [I(f"s_lshl_b32 {sT2}, {sRB}, 7\nv_add_u32 v{wa+1}, {sT2}, v{wa}")]
    s += [I(f"s_mov_b64 exec, {sE48}") + I(f"ds_write_b64 v{wa+1}, {q(c1r,2)}\nds_write_b64 v{wa}, {q(c5r,2)} offset:512", tag="ct") + I("s_mov_b64 exec, -1")]
    m, sd = str_, str_ + 2
    s += I(f"""v_rcp_f32 v{m+1}, v{sd}
v_mul_f32 {vC2[0]}, v{sd}, v{sd}
v_sub_f32 v{m}, 0, v{m}
v_mul_f32 {vC1[0]}, {LOG2E | 0x80000000:#x}, v{m+1}
v_cvt_pk_bf16_f32 v{vMn[0]}, v{m}, v{m}
v_mov_b32 {vC2[1]}, {vC2[0]}
v_lshlrev_b32 v{m+1}, 16, v{vMn[0]}
v_mov_b32 {vC1[1]}, {vC1[0]}
v_sub_f32 v{m}, v{m}, v{m+1}
v_permlane16_swap_b32 {vC2[0]}, {vC2[1]}
v_cvt_pk_bf16_f32 v{vMn[0]+1}, v{m}, v{m}
v_permlane16_swap_b32 {vC1[0]}, {vC1[1]}
v_mov_b32 v{vMn[1]}, v{vMn[0]}
v_mov_b32 v{vMn[1]+1}, v{vMn[0]+1}
v_mov_b32 v{m}, 0
s_nop 0
v_permlane16_swap_b32 v{vMn[0]}, v{vMn[1]}
v_permlane16_swap_b32 v{vMn[0]+1}, v{vMn[1]+1}""")
    s += [[]]
    s += I("\n".join(f"v_mov_b32_dpp v{vMn[0]+i}, v{m} quad_perm:[0,1,2,3] row_mask:0x8 bank_mask:0xf" for i in range(4)))
    W(s, *C["cschk"])

    if not T:
        th = I(f"""s_lshl_b32 {sT2}, {sCH}, 5
v_lshrrev_b32 {vTH}, 3, {vL16}
v_xor_b32 {vTH}, {sT2}, {vTH}
v_and_b32 {vTH}, 0x20, {vTH}
v_lshrrev_b32 {vFl}, 1, {vL16}
v_and_b32 {vFl}, 0x18, {vFl}
v_add_u32 {vTH}, {vTH}, {vFl}
v_and_b32 {vFl}, 0x3c0, {vL16}
v_add_u32 {vTH}, {vTH}, {vFl}""")
        assert x_last + 1 < 119
        W([th], x_last + 1)
    s = [I(f"s_lshl_b32 {sT2}, {sRB}, 13\nv_lshrrev_b32 {vW2}, 7, {vL16}\nv_lshl_add_u32 {vW2}, {vW2}, 10, {sT2}"),
         I(swz8(vFl) + f"v_add_u32 {vW2}, {vW2}, {vFl}")]
    a0 = max(p2_last, x_last + 1) + 1
    assert a0 + 2 < w2_first - 4
    W(s, a0, a0 + 2)

    if T:
        rd, mm = corr(ACC0, [(0, 0), (1, 16), (2, 32), (3, 48)])
        Kp = ACC1 + 16; tt = ACC1 + 24
        NISC = 0xbf317218
        vaddr = lambda d, tm, base: I(f"""s_lshl_b32 {sT2}, {sCH}, 6
v_xor_b32 v{d}, {sT2}, {vL16}
v_and_b32 v{d}, 0x60, v{d}
v_lshrrev_b32 v{tm}, 5, {vL16}
v_and_b32 v{tm}, 0x18, v{tm}
v_add_u32 v{d}, v{d}, v{tm}
v_and_b32 v{tm}, 0xf0, {vL16}
v_lshl_add_u32 v{d}, v{tm}, 3, v{d}
s_lshl_b32 {sT2}, {sRB}, 12
s_add_u32 {sT2}, {sT2}, {base:#x}
v_add_u32 v{d}, {sT2}, v{d}
v_xor_b32 v{d+1}, 32, v{d}""")
        kaddr = lambda d, tm, inc: I(f"""s_add_u32 {sT2}, {sRB}, {inc}
s_and_b32 {sT2}, {sT2}, 3
s_lshl_b32 {sT2}, {sT2}, 1
s_add_u32 {sT2}, {sT2}, {sCH}
s_lshl_b32 {sT2}, {sT2}, 10
s_add_u32 {sT2}, {sT2}, {K_OFF:#x}
v_and_b32 v{d}, 0x70, {vL16}
v_lshlrev_b32 v{d}, 1, v{d}
v_and_b32 v{tm}, 0x300, {vL16}
v_add3_u32 v{d}, v{d}, v{tm}, {sT2}""")
        s = rd + mm
        s += I(f"v_mul_f32 v{tt}, {NISC:#x}, {vC1[0]}\nv_mul_f32 v{tt+1}, {NISC:#x}, {vC1[1]}")
        s += [vaddr(tt+2, tt+3, V_OFF + 4096)]
        s += [kaddr(tt+4, tt+5, 1)]
        s += [I(f"""s_mov_b32 s94, 0xff00ff00
s_mov_b32 s95, 0xff00ff00
s_lshl_b32 {sT2}, {sR}, 3
s_add_u32 {sKV}, {sKV}, {sT2}
s_lshl_b32 {sKV}, {sKV}, 1
s_add_u32 {sKV}, {sKV}, {sCH}
s_lshl_b32 {sHF}, {sKV}, 7
s_lshl_b32 {sKV}, {sKV}, 12
s_add_u32 {sKV}, {sKV}, {KVH_OFF:#x}""")]
        s += [I(f"s_mov_b32 s36, s24\ns_mov_b32 s37, s25\ns_cmp_lg_u32 {sR}, 0\ns_cselect_b32 {sT2}, {WS_SIZE:#x}, 0\ns_and_b32 s38, {sT2}, s90\ns_mov_b32 s39, 0x20000")]
        def only_rb(val, body):
            l = newlab("rb")
            for x in body: x.cond = True
            return I(f"s_cmp_lg_u32 {sRB}, {val}\ns_cbranch_scc1 {l}") + body + I(f"{l}:")
        for f in (0, 1):
            for b in range(2):
                a = ACC0 + (2*f+b)*4
                s += [Ins(f"v_mul_f32 v{a+r}, v{tt+b}, v{a+r}") for r in range(4)]
                s += [Ins(f"v_cvt_pk_bf16_f32 v{Kp+(2*b+f)*2+i}, v{a+2*i}, v{a+2*i+1}") for i in range(2)]
        s += [I(f"s_mov_b64 exec, {sExK}") + I(f"ds_write_b128 v{tt+4}, {q(Kp)}\nds_write_b128 v{tt+4}, {q(Kp+4)} offset:16", tag="kvw") + I("s_mov_b64 exec, -1")]
        for f in (2, 3):
            for b in range(2):
                a = ACC0 + (2*f+b)*4; d = ACC0 + (2*b+f-2)*2
                s += [Ins(f"v_mul_f32 v{a+r}, v{tt+b}, v{a+r}") for r in range(4)]
                s += [Ins(f"v_cvt_pk_bf16_f32 v{d+i}, v{a+2*i}, v{a+2*i+1}") for i in range(2)]
                s += I(f"ds_write_b64 v{tt+f}, {q(d,2)} offset:{2048*b}", tag="kvw")
        s += [only_rb(3, I("\n".join(f"buffer_store_dwordx4 {q(r)}, {vL16}, {SWS}, {sKV} offen offset:{1024*i} sc1" for i, r in enumerate((Kp, Kp+4, ACC0, ACC0+4))), tag="hs"))]
        W(s, *C["kv"])
        fl = flag("hs", sHF, HF_OFF)[0]
        W([[fl[0]] + only_rb(3, fl[1:])], C["hflag"])
        Qp = ACC1 + 24
        rd, mm = corr(ACC1, [(0, 128), (1, 144)])
        s = rd + mm + [[]] * 3
        for f in (0, 1):
            for b in range(2):
                a = ACC1 + (2*f+b)*4
                s += [Ins(f"v_cvt_pk_bf16_f32 v{Qp+(2*b+f)*2+i}, v{a+2*i}, v{a+2*i+1}") for i in range(2)]
        W(s, *C["qepi"])
        hp = f"s_add_u32 {sT2}, {sHF}, {HF_OFF - 16*128:#x}\nv_mov_b32 v{TMP}, 0\nbuffer_load_dwordx2 {q(vP,2)}, v{TMP}, {SHL}, {sT2} offen sc1"
        W([only_rb(0, I(hp))], C["hpoll"])
        s = spin("halo", hp, f"v_cmp_ne_u64 vcc, {sN}, {q(vP,2)}\ns_cmp_lg_u32 s38, 0\ns_cselect_b64 vcc, vcc, 0")
        s += [only_rb(0, I(f"s_sub_u32 {sT2}, {sKV}, {16*4096}\n" + "\n".join(f"buffer_load_dwordx4 {q(ACC1+4*i)}, {vL16}, {SHL}, {sT2} offen offset:{1024*i} sc1" for i in range(4))))]
        W(s, C["hchk"], C["hchk"] + 2)
        B = 128
        bc, bp, Sc, Sp = B, B+4, B+8, B+24
        d0 = TMP; M01 = TMP+1; M23 = TMP+2; cqr = [TMP+3, TMP+4]; ta = TMP+5; tb = TMP+6; tc = TMP+7
        s = []
        s += [I(f"s_or_b32 {sT2}, {sR}, {sRB}\ns_cmp_eq_u32 {sT2}, 0\ns_cselect_b32 {sThr}, -100, -9")]
        s += I(f"v_bfe_u32 v{d0}, {vL16}, 4, 4\nv_lshrrev_b32 v{ta}, 8, {vL16}\nv_lshlrev_b32 v{ta}, 2, v{ta}\nv_sub_u32 v{d0}, v{d0}, v{ta}\nv_mov_b32 v{tb}, 0xff800000")
        for r in range(4):
            s += I(f"v_subrev_u32 v{ta}, {r}, v{d0}")
            s += [I(f"v_cmp_lt_u32 vcc, 7, v{ta}\nv_cmp_lt_i32 {sTmp2}, {sThr}, v{ta}\nv_ashrrev_i32 v{Sp+r}, 31, v{ta}\nv_cndmask_b32 v{bc+r}, 0, v{tb}, vcc\nv_cndmask_b32 v{bp+r}, 0, v{tb}, {sTmp2}")]
        s += I(f"v_bfi_b32 v{M01}, {sLo16}, v{Sp}, v{Sp+1}\nv_bfi_b32 v{M23}, {sLo16}, v{Sp+2}, v{Sp+3}")
        s += I(f"v_mul_f32 v{cqr[0]}, 0xbe800000, {vC1[0]}\nv_mul_f32 v{cqr[1]}, 0xbe800000, {vC1[1]}")
        for it in range(4): s.append(mf16(Sc+4*it, Kp+2*it, Qp+2*it, bc))
        s += [kaddr(ta, tb, 0)]
        s += [vaddr(tb, tc, V_OFF)]
        s += [I(f"s_and_b64 exec, {sEx0}, {sExK}") + I(f"ds_write_b128 v{ta}, {q(ACC1)}\nds_write_b128 v{ta}, {q(ACC1+4)} offset:16") + I(f"s_mov_b64 exec, {sEx0}") +
              I("\n".join(f"ds_write_b64 v{tb+hh}, {q(ACC1+8+(2*b+hh)*2,2)} offset:{2048*b}" for b in range(2) for hh in range(2))) + I("s_mov_b64 exec, -1")]
        s += I(f"ds_read_b128 {q(Kp)}, v{ta}\nds_read_b128 {q(Kp+4)}, v{ta} offset:16")
        s += [I(f"""s_lshl_b32 {sT2}, {sCH}, 6
v_lshrrev_b32 v{ta}, 2, {vL16}
v_xor_b32 v{ta}, {sT2}, v{ta}
v_and_b32 v{ta}, 0x60, v{ta}
v_lshrrev_b32 v{tb}, 1, {vL16}
v_and_b32 v{tb}, 0x18, v{tb}
v_add_u32 v{ta}, v{ta}, v{tb}
v_and_b32 v{tb}, 0x3c0, {vL16}
v_lshl_add_u32 v{ta}, v{tb}, 1, v{ta}
s_lshl_b32 {sT2}, {sRB}, 12
s_add_u32 {sT2}, {sT2}, {V_OFF:#x}
v_add_u32 v{ta}, {sT2}, v{ta}
v_xor_b32 v{tb}, 32, v{ta}""")]
        Vf = ACC1
        for it in range(4):
            b, hh = it >> 1, it & 1
            s += I(f"ds_read_b64_tr_b16 {q(Vf+4*it,2)}, v{ta+hh} offset:{2048*b}\nds_read_b64_tr_b16 {q(Vf+4*it+2,2)}, v{ta+hh} offset:{4096+2048*b}")
        mx = [bc, bc+1, bc+2, bc+3]
        for half in range(2):
            for k in range(2): s.append(mf16(Sp+4*k, Kp+2*(2*half+k), Qp+2*(2*half+k), bp))
            s += [[]] * 6
            for k in range(2):
                it = 2*half + k
                s += [Ins(f"v_max_f32 v{Sc+4*it+r}, v{Sc+4*it+r}, v{Sp+4*k+r}") for r in range(4)]
                s += I(f"v_max3_f32 v{mx[it]}, v{Sc+4*it}, v{Sc+4*it+1}, v{Sc+4*it+2}\nv_max_f32 v{mx[it]}, v{mx[it]}, v{Sc+4*it+3}")
        m0_, m1_, m2_, m3_ = mx
        s += I(f"""v_permlane32_swap_b32 v{m0_}, v{m1_}
v_permlane32_swap_b32 v{m2_}, v{m3_}
v_max_f32 v{m0_}, v{m0_}, v{m1_}
v_max_f32 v{m2_}, v{m2_}, v{m3_}
v_mov_b32 v{Sp}, 0x3f803f80
v_mov_b32 v{Sp+1}, 0x3f803f80
v_permlane16_swap_b32 v{m0_}, v{m2_}
v_max_f32 v{m0_}, v{m0_}, v{m2_}
v_mov_b32 v{m2_}, v{m0_}
v_mov_b32 v{Sp+2}, 0x3f803f80
v_mov_b32 v{Sp+3}, 0x3f803f80
v_permlane16_swap_b32 v{m0_}, v{m2_}
v_mov_b32 v{m1_}, v{m0_}
v_mov_b32 v{m3_}, v{m2_}""")
        s += [[]]
        s += I(f"v_permlane32_swap_b32 v{m0_}, v{m1_}\nv_permlane32_swap_b32 v{m2_}, v{m3_}")
        s += [Ins(f"v_mul_f32 v{mx[it]}, v{cqr[it>>1]}, v{mx[it]}") for it in range(4)]
        Ob = Kp
        for it in range(4):
            a = Sc + 4*it
            s += [Ins(f"v_fma_f32 v{a+r}, v{a+r}, v{cqr[it>>1]}, -v{mx[it]}") for r in range(4)]
            s += [Ins(f"v_exp_f32 v{a+r}, v{a+r}") for r in range(4)]
            s += I(f"v_cvt_pk_bf16_f32 v{bp}, v{a}, v{a+1}\nv_cvt_pk_bf16_f32 v{bp+1}, v{a+2}, v{a+3}")
            s += I(f"v_and_b32 v{a}, v{M01}, v{bp}\nv_and_b32 v{a+1}, v{M23}, v{bp+1}\nv_bfi_b32 v{a+2}, v{M01}, 0, v{bp}\nv_bfi_b32 v{a+3}, v{M23}, 0, v{bp+1}")
        for it in range(4): s.append(mf32(Ob+4*it, Vf+4*it, Sc+4*it, None))
        s += [[]] * 2
        for it in range(4): s.append(mf32(Vf+4*it, Sp, Sc+4*it, None))
        s += [[]] * 6
        s += [Ins(f"v_rcp_f32 v{Vf+4*it}, v{Vf+4*it}") for it in range(4)]
        for it in range(4):
            b, hh = it >> 1, it & 1
            s += [Ins(f"v_mul_f32 v{Ob+4*it+r}, v{Ob+4*it+r}, v{Vf+4*it}") for r in range(4)]
            s += [Ins(f"v_cvt_pk_bf16_f32 v{Sc+4*b+2*hh+i}, v{Ob+4*it+2*i}, v{Ob+4*it+2*i+1}") for i in range(2)]
            if hh: s += hstore(Sc+4*b, 12 + b, "e2")
        W(s, *C["att"])
        W(flag("e2", sFo, FL_OFF + 2*128), C["oflag"])
        last_c0, last_ev = 7, 4
    else:
        rd, it = ffn_epi(0, 0, "e0")
        W(rd + it, *C["epi1"])
        W(flag("e0", sFo, FL_OFF), C["aflag"])
        rd, mm = corr(ACC1, [(0, 128), (1, 144)])
        s = rd + mm + [[]] * 3
        for b in range(2):
            G = [ACC1+b*4+r for r in range(4)]; Uu = [ACC1+(2+b)*4+r for r in range(4)]
            s += silu(G, Uu, b)
            s += [Ins(f"v_cvt_pk_bf16_f32 v{ACC1+16+2*b+i}, v{Uu[2*i]}, v{Uu[2*i+1]}") for i in range(2)]
        s += [I(f"s_add_u32 {sT2}, {sHF}, {8*1024}") + I(f"buffer_store_dwordx4 {q(ACC1+16)}, {vL16}, {SWS}, {sT2} offen sc1", tag="e1")]
        W(s, *C["hepi"])
        W(flag("e1", sFo, FL_OFF + 128), C["hfl"])
        last_c0, last_ev = 5, 3

    s = [I(f"""s_and_b32 {sT2}, s2, 7
s_lshl_b32 {sT2}, {sT2}, 2
s_bfe_u32 {sAo}, s2, 0x20003
s_add_u32 {sT2}, {sT2}, {sAo}
s_lshl_b32 {sT2}, {sT2}, 1
s_add_u32 {sT2}, {sT2}, {sCH}
s_lshl_b32 {sOo}, {sT2}, 5
s_lshl_b32 {sT2}, {sT2}, 2
s_add_u32 {sT2}, {sT2}, {sRB}
s_mul_i32 {sAo}, {sT2}, {36*1024}
s_mul_i32 {sT2}, {sT2}, 640
s_add_u32 {sT2}, {sT2}, {FL_OFF:#x}
v_min_u32 {vFl}, 0x130, {vL16}
v_lshrrev_b32 {vT2}, 1, {vFl}
v_and_b32 {vT2}, 0x18, {vT2}
v_and_b32 {vFl}, 0x1c0, {vFl}
v_lshlrev_b32 {vFl}, 1, {vFl}
v_add3_u32 {vFl}, {vFl}, {vT2}, {sT2}""")]
    s += [I(f"s_lshr_b32 {sT2}, {sRB}, 1\ns_lshl_b32 {sT2}, {sT2}, 6") + lane_T(vTH, sT2, vT2) +
          I(f"s_lshl_b32 {sT2}, {sT2}, 7\nv_add_u32 {vTH}, {sT2}, {vTH}\ns_and_b32 {sT2}, {sRB}, 1\ns_lshl_b32 {sT2}, {sT2}, 10\nv_add_u32 {vTH}, {sT2}, {vTH}")]
    ap = max(186, a0 + 3)
    W(s, ap, ap + 4)
    rd, it = ffn_epi(2, last_c0, "el")
    W(rd, 312, 316)
    W(stamp(2) + [flat(it)] + stamp(40), 319)
    W(flag("el", sFo, FL_OFF + last_ev*128), C["lflag"])
    ra = ACC0 + 20
    red0 = [s_ for s_ in range(8) if all(slot[("w", n)] not in (s_, s_+1, s_+2) for n in range(20 + max(bars) - 40, 38)) and s_ <= 5]
    need_bar = not red0
    rbase = U(red0[0]) if red0 else 0
    s = [I(f"""s_and_b32 {sT2}, {sRB}, 1
s_add_u32 {sOo}, {sOo}, {sT2}
s_lshl_b32 {sOo}, {sOo}, 10
s_lshr_b32 {sT2}, s2, 5
s_lshl_b32 {sT2}, {sT2}, 7
s_add_u32 {sOo}, {sOo}, {sT2}
s_lshr_b32 {sT2}, {sRB}, 1
s_lshl_b32 {sT2}, {sT2}, 6
s_add_u32 {sOo}, {sOo}, {sT2}
v_and_b32 v{ra}, 0xf0, {vL16}
v_lshlrev_b32 v{ra}, 7, v{ra}
v_lshrrev_b32 v{ra+1}, 3, {vL16}
v_and_b32 v{ra+1}, 0x20, v{ra+1}
v_add_u32 v{ra}, v{ra}, v{ra+1}
v_lshrrev_b32 v{ra+1}, 9, {vL16}
v_lshl_add_u32 v{ra}, v{ra+1}, 4, v{ra}"""),
         I(f"buffer_load_dwordx4 {q(ACC0+16)}, v{ra}, {SX}, {sOo} offen")]
    s += [I(f"s_mul_i32 {sT2}, {sW}, 6144\ns_add_u32 {sT2}, {sT2}, {rbase}\nv_add_u32 v{ra+2}, {sT2}, {vL16}")]
    for rel in (1, 2, 3):
        s += [I(f"s_xor_b32 {sT2}, {sW}, {rel}\ns_mul_i32 {sT2}, {sT2}, 6144\ns_add_u32 {sT2}, {sT2}, {rbase}\nv_add_u32 v{ra+2+rel}, {sT2}, {vL16}")]
    W(s, 344, 356)
    xr = ACC0
    s = I(f"v_permlane16_swap_b32 v{ACC0+16}, v{ACC0+18}\nv_permlane16_swap_b32 v{ACC0+17}, v{ACC0+19}")
    for i in range(4):
        s += I(f"v_lshlrev_b32 v{xr+2*i}, 16, v{ACC0+16+i}\nv_and_b32 v{xr+2*i+1}, 0xffff0000, v{ACC0+16+i}")
    W(s, 440, 450)
    P += M[0]
    P += stamp(3)
    E = []
    if need_bar: E += [Ins("s_barrier")]
    for rel in (1, 2, 3):
        b, p = rel & 1, rel >> 1
        for tq in range(2):
            E += I(f"ds_write_b128 v{ra+2}, {q(ACC1+(2*(2*p+tq)+b)*4)} offset:{((rel-1)*2+tq)*1024}", tag="red")
    for tq in range(2):
        for r in range(4): E += I(f"v_add_f32 v{xr+4*tq+r}, v{xr+4*tq+r}, v{ACC1+8*tq+r}")
    E += [Wait("red"), Ins("s_barrier")]
    for rel in (1, 2, 3):
        for tq in range(2):
            E += I(f"ds_read_b128 {q(128+((rel-1)*2+tq)*4)}, v{ra+2+rel} offset:{((rel-1)*2+tq)*1024}")
    for rel in (1, 2, 3):
        for tq in range(2):
            for r in range(4): E += I(f"v_add_f32 v{xr+4*tq+r}, v{xr+4*tq+r}, v{128+((rel-1)*2+tq)*4+r}")
    for i in range(4):
        E += I(f"v_cvt_pk_bf16_f32 v{xr+8+i}, v{xr+2*i}, v{xr+2*i+1}")
    E += I(f"v_permlane16_swap_b32 v{xr+8}, v{xr+10}\nv_permlane16_swap_b32 v{xr+9}, v{xr+11}")
    E += I(f"buffer_store_dwordx4 {q(xr+8)}, v{ra}, {SOUT}, {sOo} offen {C['out_flags']}")
    P += E
    if C["stamps"]:
        P += stamp(41) + I("s_waitcnt vmcnt(0)") + stamp(4)
        P += I(f"""s_add_u32 s82, s82, {STAMP_OFF:#x}
s_addc_u32 s83, s83, 0
s_lshl_b32 {sT}, s2, 3
s_add_u32 {sT}, {sT}, {sW}
s_lshl_b32 {sT}, {sT}, 8
v_lshrrev_b32 v24, 2, {vL16}
v_add_u32 v24, {sT}, v24
global_store_dword v24, v0, s[82:83]""")
    if C.get("probe") is not None:
        P += stamp(41) + I("s_waitcnt vmcnt(0)") + stamp(4)
        l = newlab("pr")
        r = Ins(";raw")
        src = sN0 if C["probe"] == -1 else "s100"
        r.text = (f"s_waitcnt lgkmcnt(0)\ns_add_u32 {sT}, {src}, 6000\n{l}:\ns_sleep 2\ns_memrealtime s[98:99]\ns_waitcnt lgkmcnt(0)\n"
                  f"s_sub_u32 {sT2}, s98, {sT}\ns_cmp_lt_i32 {sT2}, 0\ns_cbranch_scc1 {l}")
        P += [r]
    P += I("s_endpgm")
    return P

def flat2(x): return [b for l in x for b in l]

def generate():
    global slow
    slow = []
    lab[0] = 0
    texts = []
    for ty in ("T", "F"):
        com = common_prologue()
        if CFG["stamps"]:
            k = [i for i, x in enumerate(com) if x.text.startswith("s_waitcnt lgkmcnt(0)")][0]
            com[k+1:k+1] = I(f"v_mov_b32 v0, 0\nv_writelane_b32 v0, {sN0}, 0")
        if CFG.get("probe") == 0:
            k = [i for i, x in enumerate(com) if x.text.startswith("s_waitcnt lgkmcnt(0)")][0]
            com[k+1:k+1] = I(f"s_mov_b32 s100, {sN0}")
        prog, st = finalize(com + flat(gen_type(ty)))
        prev = None
        for x in prog:
            if hasattr(x, "sid"):
                x.text = (f"v_writelane_b32 v0, s100, {prev}\n" if prev is not None else "") + "s_memrealtime s[100:101]"
                if x.sid in (41, 4, 1, 2): x.text += f"\ns_waitcnt lgkmcnt(0)\nv_writelane_b32 v0, s100, {x.sid}"; prev = None
                else: prev = x.sid
        lines = [x.text for x in prog]
        if ty == "F":
            k = lines.index("; SPLIT")
            lines = ["L_F:"] + lines[k+1:]
        texts.append("\n".join(lines))
        sys.stderr.write(f"type {ty}: {len(prog)} instrs, nop states {st}\n")
    hdr = open("cdna_kernels/" + KN + ".s.ref").read().split("; Override launch")[0]
    return hdr + f"""; bars={CFG["bars"]}
; @launch grid=(256,1,1) block=(512,1,1) lds=163840
.amdgcn_target "amdgcn-amd-amdhsa--gfx950"
.text
.globl {KN}_kernel
.p2align 8
.type {KN}_kernel,@function
{KN}_kernel:
""" + texts[0] + "\n" + texts[1] + "\n" + "\n".join(slow) + f"""
L_end:
s_endpgm
.section .rodata,"a"
.p2align 6
.amdhsa_kernel {KN}_kernel
  .amdhsa_next_free_vgpr 256
  .amdhsa_next_free_sgpr 102
  .amdhsa_accum_offset 256
  .amdhsa_group_segment_fixed_size 0
  .amdhsa_kernarg_size 80
  .amdhsa_user_sgpr_count 2
  .amdhsa_user_sgpr_kernarg_segment_ptr 1
  .amdhsa_system_sgpr_workgroup_id_x 1
  .amdhsa_float_denorm_mode_32 3
.end_amdhsa_kernel
"""

if __name__ == "__main__":
    out = sys.argv[1] if len(sys.argv) > 1 else "cdna_kernels/" + KN + ".s"
    for a in sys.argv[2:]:
        if a == "--stamps": CFG["stamps"] = True
        else:
            k, v = a.split("=", 1); CFG[k] = json.loads(v)
    open(out, "w").write(generate())
```

```python
import re

REG_RE = re.compile(r"^(-?)(?:abs\()?([vsa])(?:\[(\d+):(\d+)\]|(\d+))\)?$")

def regs_of(tok):
    tok = tok.strip()
    if tok in ("vcc", "exec"): return [tok]
    if tok in ("vcc_lo", "vcc_hi"): return ["vcc"]
    if tok in ("exec_lo", "exec_hi"): return ["exec"]
    if tok == "m0": return ["m0"]
    m = REG_RE.match(tok)
    if not m: return []
    k = m.group(2)
    if m.group(5) is not None: return [f"{k}{m.group(5)}"]
    return [f"{k}{i}" for i in range(int(m.group(3)), int(m.group(4)) + 1)]

TRANS = ("v_exp_f32", "v_rcp_f32", "v_rsq_f32", "v_sqrt_f32", "v_log_f32")

class Ins:
    def __init__(self, text, tag=None, cond=False, anchor=False):
        self.text = text.strip()
        self.tag = tag
        self.cond = cond
        self.anchor = anchor
        self.parse()
    def parse(self):
        t = self.text
        self.rd = set(); self.wr = set(); self.srcc = set(); self.srcab = set()
        if t.endswith(":") or t.startswith(".") or t.startswith(";"):
            self.kind = "label"; self.op = t; return
        sp = t.split(None, 1)
        op = sp[0]; self.op = op
        rest = sp[1] if len(sp) > 1 else ""
        ops = [o.strip() for o in rest.split(",")] if rest else []
        mods = []
        if ops:
            last = ops[-1].split()
            ops2 = []; acc = ""
            depth = 0
            for piece in rest.split(","):
                acc = acc + "," + piece if acc else piece
                depth = acc.count("[") - acc.count("]")
                if depth == 0:
                    ops2.append(acc.strip()); acc = ""
            ops = ops2
            last = ops[-1].split()
            ops[-1] = last[0]; mods = last[1:]
        self.mods = mods
        R = lambda i: set(regs_of(ops[i])) if i < len(ops) else set()
        allr = lambda lo: set().union(*[R(i) for i in range(lo, len(ops))]) if len(ops) > lo else set()
        if op == "WAIT":
            self.kind = "WAIT"; return
        if op.startswith("v_mfma"):
            self.kind = "mfma"; self.wr = R(0); self.srcab = R(1) | R(2); self.srcc = R(3); self.rd = self.srcab | self.srcc
            assert "16x16" in op
        elif op.startswith("v_"):
            self.kind = "valu"
            self.wr = R(0); self.rd = allr(1)
            if op.startswith("v_permlane") or op.startswith("v_swap"):
                self.wr = R(0) | R(1); self.rd = set(self.wr)
            if op.startswith("v_fmac") or op.startswith("v_dot2c") or "_dpp" in op:
                self.rd |= R(0)
            if op.startswith("v_add_co") or op.startswith("v_addc_co"):
                self.wr |= R(1)
        elif op.startswith("ds_read"):
            self.kind = "dsr"; self.wr = R(0); self.rd = allr(1)
        elif op.startswith("ds_write"):
            self.kind = "dsw"; self.rd = allr(0)
        elif op.startswith("buffer_load") or op.startswith("global_load"):
            if "lds" in mods:
                self.kind = "dma"; self.rd = allr(0) | {"m0"}
            else:
                self.kind = "vld"; self.wr = R(0); self.rd = allr(1)
        elif op.startswith("buffer_store"):
            self.kind = "vst"; self.rd = allr(0); self.data = R(0)
        elif op.startswith("global_store"):
            self.kind = "vst"; self.rd = allr(0); self.data = R(1)
        elif op.startswith("s_load") or op.startswith("s_memrealtime") or op.startswith("s_memtime"):
            self.kind = "smem"; self.wr = R(0); self.rd = allr(1)
        elif op == "s_waitcnt": self.kind = "waitcnt"
        elif op == "s_barrier": self.kind = "barrier"
        elif op == "s_nop": self.kind = "nop"; self.n = int(ops[0]) + 1
        elif op.startswith("s_cbranch") or op == "s_branch" or op == "s_endpgm": self.kind = "branch"
        elif op.startswith("s_cmp") or op in ("s_setprio", "s_sleep"):
            self.kind = "salu"; self.rd = allr(0)
        elif op.startswith("s_"):
            self.kind = "salu"; self.wr = R(0); self.rd = allr(1)
        else:
            raise ValueError("unknown instr " + t)
        self.trans = op.startswith(TRANS)
    def __repr__(self): return self.text

class Wait(Ins):
    def __init__(self, *tags):
        self.tags = set(tags)
        super().__init__("WAIT")

def I(text, **kw):
    return [Ins(l, **kw) for l in text.strip().split("\n") if l.strip()]

def flat(x):
    out = []
    for e in x:
        if isinstance(e, (list, tuple)): out.extend(flat(e))
        else: out.append(e)
    return out

def weave(main, side, a0, a1):
    idx = [i for i, x in enumerate(main) if x.anchor]
    n = a1 - a0
    assert 0 <= a0 < a1 <= len(idx), (a0, a1, len(idx))
    ins_after = {}
    m = len(side)
    for k, it in enumerate(side):
        a = a0 + (k * n) // m
        ins_after.setdefault(a, []).append(it)
    out = []
    anchor_no = -1
    pend = []
    for i, x in enumerate(main):
        if x.anchor or x.kind in ("barrier",) or (x.kind == "WAIT" and getattr(x, "fence", False)):
            out.extend(flat(pend)); pend = []
        out.append(x)
        if x.anchor:
            anchor_no += 1
            pend = ins_after.get(anchor_no, [])
    out.extend(flat(pend))
    return out

def insert_waits(prog):
    out = []
    lg = []
    vm = []
    def need(q, pred):
        last = -1
        for i, o in enumerate(q):
            if pred(o): last = i
        if last < 0: return None
        return last
    def emit(nv, nl):
        parts = []
        if nv is not None: parts.append(f"vmcnt({nv})")
        if nl is not None: parts.append(f"lgkmcnt({nl})")
        if parts: out.append(Ins("s_waitcnt " + " ".join(parts)))
    for x in prog:
        nv = nl = None
        if x.kind == "WAIT":
            pl = need(lg, lambda o: o.tag in x.tags); pv = need(vm, lambda o: o.tag in x.tags)
        elif x.kind in ("label", "nop", "barrier", "branch"):
            pl = pv = None
        elif x.kind == "waitcnt":
            m = re.search(r"vmcnt\((\d+)\)", x.text)
            if m:
                assert int(m.group(1)) == 0; vm = []
            m = re.search(r"lgkmcnt\((\d+)\)", x.text)
            if m:
                assert int(m.group(1)) == 0; lg = []
            out.append(x); continue
        else:
            touch = x.rd | x.wr
            pl = need(lg, lambda o: o.wr & touch); pv = need(vm, lambda o: o.wr & touch)
        if x.cond:
            assert pl is None, ('lds wait inside cond block', x.text)
            if pv is not None:
                assert vm[pv].cond == x.cond, ('cond block waits on unconditional op', x.text)
                nv = min(63, sum(1 for o in vm[pv+1:] if not o.cond))
                vm = [o for i, o in enumerate(vm) if i > pv or o.cond != x.cond]
                emit(nv, None); out[-1].cond = x.cond
        else:
            if pl is not None:
                if any(o.kind == "smem" for o in lg): nl = 0; lg = []
                else:
                    nl = min(15, sum(1 for o in lg[pl+1:] if not o.cond)); lg = lg[pl+1:]
            if pv is not None:
                nv = min(63, sum(1 for o in vm[pv+1:] if not o.cond)); vm = vm[pv+1:]
            emit(nv, nl)
        if x.kind == "WAIT": continue
        out.append(x)
        if x.kind in ("dsr", "dsw", "smem"): lg.append(x)
        if x.kind in ("dma", "vld", "vst"): vm.append(x)
    return out

def hazard_need(p, c):
    n = 0
    pv = {r for r in p.wr if r[0] in "va" and r != "vcc"}
    ps = p.wr - pv
    if p.kind == "valu":
        if c.kind == "mfma" and pv & c.rd: n = max(n, 2)
        if c.kind == "valu":
            if p.trans and not c.trans and pv & c.rd: n = max(n, 1)
            if (c.op.startswith("v_permlane") or "_dpp" in c.op) and pv & c.rd: n = max(n, 2)
            if c.op.startswith("v_read") and pv & c.rd: n = max(n, 1)
            if ps & c.rd: n = max(n, 4 if c.op.startswith("v_readlane") else 2)
            if p.op.startswith("v_dot2") and (pv & (c.rd | c.wr)):
                if c.op != p.op: n = max(n, 3)
        if c.kind in ("dma", "vld", "vst") and ps & c.rd: n = max(n, 5)
        if p.op.startswith("v_dot2") and c.kind in ("vst", "dsw", "mfma") and pv & c.rd: n = max(n, 3)
    if p.kind == "mfma":
        if c.kind == "mfma":
            if p.wr & c.srcab: n = max(n, 8)
            if p.wr & c.srcc and p.wr != c.srcc: n = max(n, 6)
            if p.wr & c.wr and not (p.wr & c.srcc): n = max(n, 6)
        elif c.kind in ("valu", "dsr", "dsw", "vld", "vst", "dma"):
            if p.wr & (c.rd | c.wr): n = max(n, 8)
            if c.kind == "valu" and p.srcc & c.wr: n = max(n, 3)
    if p.kind == "vst" and len(p.data) >= 3:
        if p.data & c.wr: n = max(n, 2)
    if p.kind == "salu" and "m0" in p.wr and c.kind == "dma": n = max(n, 1)
    return n

def insert_nops(prog):
    out = []
    stats = 0
    for x in prog:
        if x.kind == "label":
            out.append(x); continue
        need = 0
        dist = 0
        for p in reversed(out):
            if p.kind == "label": continue
            if dist >= 9: break
            h = hazard_need(p, x)
            if h - dist > need: need = h - dist
            if not p.cond or x.cond == p.cond: dist += p.n if p.kind == "nop" else 1
        if need > 0:
            out.append(Ins(f"s_nop {need-1}")); stats += need
        out.append(x)
    return out, stats

def finalize(prog):
    prog = flat(prog)
    prog = insert_waits(prog)
    prog, st = insert_nops(prog)
    return prog, st
```

```python
import sys, json
from fw import *

KN = "parallel_sum__sliding_local_dilated__glu_gated_swiglu__prompt"
H_OFF, KVH_OFF, ST_OFF, CS_OFF, FL_OFF, HF_OFF, WS_SIZE = 0, 0xA00000, 0xB00000, 0xB10000, 0xC00000, 0xC40000, 0x1200000
XC_OFF = 0xD00000
STAMP_OFF = 128 << 20
OOR = 0x40000000
U = lambda n: n * 16384
MREG = U(8)
V_OFF = MREG
K_OFF = MREG + 20480
CT_OFF = MREG + 28672
DUMMY_OFF = MREG + 32768 - 256
SX, SP1, SPF, SW2, SWO, SWS, SOUT, SCS, SHL = [f"s[{4*i+4}:{4*i+7}]" for i in range(9)]
sN = "s[40:41]"; sN0, sN1 = "s40", "s41"
(sW, sRB, sCH, sR, sD, sCQ, sJ, sM, sMX, sXo, sC1, sC2, sC3, sW2o, sWOo, sT, sT2, sHo, sFo, sAo, sCSo, sSTo) = [f"s{i}" for i in range(42, 64)]
RHO = [f"s{68+i}" for i in range(8)]
SA = [f"s{64+i}" for i in range(4)]; SWt = [f"s{76+i}" for i in range(4)]; SOt = ["s47", "s48", "s56", "s96"]
sDBG = "s[80:81]"
sStr, sCSs = "s82", "s83"
(sThr, sKV, sHF, sCnt, sOo, sPar) = [f"s{i}" for i in range(84, 90)]
sA2, sO2, sFl, sC2s = "s90", "s91", "s92", "s93"; sExK = "s[94:95]"; sRot = "s96"; sCS5 = "s97"; sTmp2 = "s[98:99]"
sKH = "s3"
vL16, vT0, vT1, vWa, vWb, vCT, vCS = "v1", "v2", "v3", "v4", "v5", "v6", "v7"
vN0, vN1 = "v8", "v9"
vC1 = ["v10", "v11"]; vC2 = ["v12", "v13"]
vMn = [14, 16]
vXR0, vXR1, vX0, vX1 = "v18", "v19", "v20", "v21"
vT2, vT3, vTH = "v18", "v19", "v20"
vVw, vKa = "v20", "v21"
vS2 = "v18"
vFl = None
vP = 22
TMP = 24
WF = [32, 48]
ACC1, ACC0 = 64, 96
ACC3 = ACC0 + 16
X0 = 128
def q(r, n=4): return f"v[{r}:{r+n-1}]"
def XF(ks, b): return X0 + 8*ks + 4*b
LOG2E = 0x3fb8aa3b

CFG = dict(
    stamps=False, mimic=True,
    bars=[0,2,4,6,8,10,12,14,16,20,24,28,32,36,40,44,52],
    pace1=3.0, pace2=3.5, pace3=1.0, pace3_from=312, maxlead1=40, halfcost=1.6,
    pre_units=2, st_at=2, nonce_at=1, setup_pro=10, setup=(20, 24),
    cs1_u=2, cs1ld=92, cs1chk=116, stat=(34, 72), stld=100, stchk=122,
    cs2_u=10, cs2pub=(166, 182), cs2ld=226, cs2chk=246,
    cs3pub=(220, 240), cs3ld=276, cs3chk=304,
    epi1=(133, 190), epi1_T=(133, 180), f1=214, epi2=(257, 290), f2=308,
    hpoll=262, hchk=289, hw=311, attpre=(290, 310), att=(321, 345), lflag_T=362, lepi_F=None, lflag_F=342,
    p0=262, c0=280, p1=328, c1=338, p2=0, c2=339, p3=372, c3=386, p4=396, c4=410, xdelay=1, map2=1, pfA_at=99, pfB_at=99,
    out_flags="", prio=1, onewait=1, rot2=1, pfcode=2,
    cold_at=132, pf1_at=15, pfw2=0, pfw2_early=0,
)

class DsAddr:
    def __init__(self, reg): self.reg = reg; self.bias = 0
    def at(self, target):
        pre = []
        if not (0 <= target - self.bias <= 65535):
            nb = target & ~0xffff
            pre = I(f"v_add_u32 {self.reg}, {(nb - self.bias) & 0xffffffff:#x}, {self.reg}")
            self.bias = nb
        return pre, target - self.bias

slow = []
lab = [0]
def newlab(p):
    lab[0] += 1
    return f"L_{p}{lab[0]}"
def stamp(i):
    if CFG.get("probe") == i:
        r = Ins(";raw"); r.text = "s_memrealtime s[100:101]"
        return [r]
    if not CFG["stamps"] or (CFG["stamps"] == 2 and i not in (2, 4)): return []
    r = Ins(";raw"); r.sid = i
    return [r]
SPIN_ID = {"nonce": 48, "cs1": 49, "cs2": 49, "cs3": 49, "st": 51, "halo": 52, "p0": 53, "p1": 54, "p2": 55, "p3": 56, "p4": 50, "x": 61}
def spin(name, reload_text, check_text):
    ls, lb, ll = newlab("slow"), newlab("back"), newlab("loop")
    body = finalize(I(f"s_waitcnt vmcnt(0) lgkmcnt(0)\ns_nop 7") + I(reload_text) + I(check_text))[0]
    slow.append(f"{ls}:\ns_mov_b32 {sCnt}, 0\n{ll}:\n" + "\n".join(x.text for x in body) +
                f"\ns_cbranch_vccz {lb}z\ns_add_u32 {sCnt}, {sCnt}, 1\ns_cmp_lt_u32 {sCnt}, 0x8000\ns_cbranch_scc1 {ll}\n{lb}z:\n" +
                (f"s_add_u32 {sCnt}, {sCnt}, 1\nv_writelane_b32 v0, {sCnt}, {SPIN_ID[name]}\n" if CFG["stamps"] else "") + f"s_nop 7\ns_branch {lb}")
    return [paired(name, I(check_text) + I(f"s_cbranch_vccnz {ls}\n{lb}:"))]
PAIR = {"st": 28, "halo": 30, "p0": 32, "p1": 34, "p2": 36, "p3": 38, "e1": 42, "e2": 44, "el": 46, "cs2": 57, "p4": 59, "cs3": 62}
def paired(name, bundle, force=False):
    if not CFG["stamps"] or name not in PAIR or (name in ("halo", "cs2", "cs3", "hs") and not force): return bundle
    return stamp(PAIR[name]) + bundle + stamp(PAIR[name] + 1)
def only_if(sreg, val, body, op="eq"):
    l = newlab("if")
    body = flat(body)
    for x in body: x.cond = f"{sreg}{op}{val}"
    return I(f"s_cmp_{op}_u32 {sreg}, {val}\ns_cbranch_scc0 {l}") + body + I(f"{l}:")

def mf32(d, a, b, c, anchor=False):
    return Ins(f"v_mfma_f32_16x16x32_bf16 {q(d)}, {q(a)}, {q(b)}, {q(c) if c is not None else 0}", anchor=anchor)
def mf16(d, a, b, c):
    return Ins(f"v_mfma_f32_16x16x16_bf16 {q(d)}, {q(a,2)}, {q(b,2)}, {q(c) if c is not None else 0}")

S2G = [(0, 4, "w2", 128), (4, 4, "w2", 256), (8, 4, "w2", 0), (12, 2, "w2", 384), (14, 4, "wo", 0)]
def s2grp(t):
    for g in S2G:
        if g[0] <= t < g[0] + g[1]: return g
AREG_BASE = [128, 136, 144, 152,   192, 200, 208, 216, 224, 232, 240, 248,   128, 136, 144, 152, 192, 200]

def rot0():
    return f"s_add_u32 {sRot}, {sJ}, {sR}\ns_and_b32 {sRot}, {sRot}, 3\ns_lshl_b32 {RHO[0]}, {sRot}, 7\n"
def rho_calc(h):
    return I(f"s_add_u32 {RHO[h]}, {RHO[h-1]}, 64\ns_and_b32 {RHO[h]}, {RHO[h]}, 0x1c0")

def common_prologue():
    C = CFG
    P = I("s_cmp_ge_u32 s2, 256\ns_cbranch_scc1 L_end")
    P += I(f"""
s_load_dwordx2 s[4:5], s[0:1], 0
s_load_dwordx2 s[8:9], s[0:1], 8
s_load_dwordx4 s[64:67], s[0:1], 32""")
    if C["pfcode"] == 2:
        P += I(f"""s_getpc_b64 {sTmp2}
s_lshr_b32 s3, s2, 3
v_and_b32 v24, 31, v0
v_lshlrev_b32 v28, 7, v0
v_cmp_eq_u32 vcc, s3, v24
v_min_u32 v28, PFMAX_A, v28
s_mov_b64 exec, vcc
global_load_dword v28, v28, {sTmp2}
s_mov_b64 exec, -1""")
    P += I(f"""
s_load_dwordx2 {sDBG}, s[0:1], 64
s_load_dwordx2 s[24:25], s[0:1], 72
s_load_dwordx2 s[20:21], s[0:1], 16
s_load_dwordx2 s[16:17], s[0:1], 48
s_load_dwordx2 s[28:29], s[0:1], 56
s_memrealtime {sN}
v_lshrrev_b32 v24, 6, v0
v_and_b32 {vL16}, 63, v0
v_readfirstlane_b32 {sW}, v24
v_lshlrev_b32 {vL16}, 4, {vL16}
s_and_b32 {sCQ}, s2, 3
s_bfe_u32 {sT}, s2, 0x10002
s_bfe_u32 {sR}, s2, 0x30003
s_lshl3_add_u32 {sR}, {sT}, {sR}
s_lshr_b32 {sJ}, s2, 6
{rot0()}s_and_b32 {sPar}, {sCQ}, 1
s_and_b32 {sRB}, {sW}, 3
s_lshr_b32 {sCH}, {sW}, 2
s_lshl_b32 {sM}, {sW}, 11
s_lshl1_add_u32 {sMX}, {sRB}, {sCH}
s_lshl_b32 {sMX}, {sMX}, 11
s_lshl2_add_u32 {sHo}, {sR}, {sRB}
s_lshl_b32 {sXo}, {sHo}, 5
s_xor_b32 {sT}, {sCH}, {sPar}
s_add_u32 {sXo}, {sXo}, {sT}
s_lshl_b32 {sXo}, {sXo}, 10
v_lshrrev_b32 v24, 7, {vL16}
v_lshrrev_b32 v25, 4, {vL16}
v_and_b32 v25, 0x30, v25
v_xor_b32 v25, v25, {vL16}
v_and_b32 v25, 0x70, v25
v_lshl_add_u32 {vX0}, v24, 11, v25
v_xor_b32 {vX1}, 64, {vX0}
v_add_u32 {vX1}, 0x3c00, {vX1}
s_and_b32 {sT}, {sRB}, 1
s_lshr_b32 {sT2}, {sRB}, 1
s_lshl2_add_u32 {sT}, {sT}, {sT2}
s_lshl_b32 {sT}, {sT}, 2
v_and_b32 v26, 4, v24
v_add3_u32 v26, v26, v24, {sT}
v_lshrrev_b32 v27, 3, {vL16}
v_and_b32 v27, 0x60, v27
v_xor_b32 v27, v27, {vL16}
v_and_b32 v27, 0x70, v27
s_mov_b32 s6, 0x200000
s_mov_b32 s7, 0x20000
s_mov_b32 s10, 0x180000
s_mov_b32 s11, 0x20000
s_mov_b32 s14, 0x1c0000
s_mov_b32 s15, 0x20000
""")
    P += I(f"s_cmp_lt_u32 {sJ}, 2\ns_cbranch_scc0 L_F\n; SPLIT")
    return P

def stats_compute(t):
    red = lambda r: "\n".join([f"v_add_f32_dpp {r}, {r}, {r} row_shr:{d} row_mask:0xf bank_mask:0xf bound_ctrl:0" for d in (1,2,4,8)] +
                              [f"v_add_f32_dpp {r}, {r}, {r} row_bcast:15 row_mask:0xa bank_mask:0xf",
                               f"v_add_f32_dpp {r}, {r}, {r} row_bcast:31 row_mask:0xc bank_mask:0xf"])
    s = ""
    for i in range(4):
        s += f"v_lshlrev_b32 v{t+2*i}, 16, v{28+i}\nv_and_b32 v{t+2*i+1}, 0xffff0000, v{28+i}\n"
    s += f"v_add_f32 v24, v{t}, v{t+1}\nv_add_f32 v25, v{t+2}, v{t+3}\nv_add_f32 v26, v{t+4}, v{t+5}\nv_add_f32 v27, v{t+6}, v{t+7}\n"
    s += "v_add_f32 v24, v24, v25\nv_add_f32 v26, v26, v27\nv_add_f32 v24, v24, v26\n"
    s += red("v24") + "\nv_mul_f32 v24, 0x3b000000, v24\n"
    s += f"v_readlane_b32 {sThr}, v24, 63\n"
    for i in range(8): s += f"v_subrev_f32 v{t+i}, {sThr}, v{t+i}\n"
    s += f"v_mul_f32 v26, v{t}, v{t}\nv_mul_f32 v27, v{t+1}, v{t+1}\n"
    for i in range(2, 8): s += f"v_fmac_f32 v{26+(i&1)}, v{t+i}, v{t+i}\n"
    s += "v_add_f32 v26, v26, v27\n" + red("v26") + "\n"
    rnd = lambda r: f"v_cvt_pk_bf16_f32 {r}, {r}, {r}\nv_lshlrev_b32 {r}, 16, {r}\n"
    s += "v_mul_f32 v26, 0x3b000000, v26\n"
    if CFG["mimic"]: s += rnd("v26") + rnd("v24")
    s += "v_add_f32 v26, 0x3727c5ac, v26\n"
    if CFG["mimic"]: s += rnd("v26")
    s += "v_sqrt_f32 v26, v26\n"
    if CFG["mimic"]: s += rnd("v26")
    return I(s)

def first_k(u):
    kind, n = u
    return 2*n, 2*n + 1
def banchor(k): return max(0, 8*(k-1))

def plan(ty):
    bars = CFG["bars"]
    order = []
    for h in range(8): order += [("x", h), ("w", h)]
    order += [("w", n) for n in range(8, 29)]
    free = {s: -1 for s in range(8)}
    extra = CFG.get("extra_" + ty)
    if extra: free[extra[0]] = extra[1]
    slot = {}; earliest = {}; vis = {}
    for u in order:
        s = min(free, key=lambda s: (free[s], s))
        assert free[s] < 999, ("no slot", u)
        slot[u] = s; earliest[u] = free[s]
        f, l = first_k(u)
        if u == ("w", 16): f = min(f, CFG["cs3pub"][0] // 8 + 1)
        if u == ("w", CFG["cs2_u"] + 1): f -= 2
        if u == ("w", CFG["cs2_u"]): l += 2
        vis[u] = max(b for b in bars if b <= f)
        rel = [b for b in bars if b > l]
        free[s] = rel[0] if rel else 999
    return order, slot, earliest, vis

def build_main(ty, slot, vis, extra_tags):
    aT = [DsAddr(vT0), DsAddr(vT1), DsAddr(vT2), DsAddr(vT3)]
    aH = DsAddr(vTH); aX = [DsAddr(vXR0), DsAddr(vXR1)]
    ks = []
    def trpair(a, dst, t0, de, tag):
        out = []
        for e in range(2):
            pre, off = a.at(t0 + e*de)
            out.append(pre + I(f"ds_read_b64_tr_b16 {q(dst+2*e,2)}, {a.reg} offset:{off}", tag=tag))
        return out
    for k in range(40):
        n, s = k >> 1, k & 1
        wf = WF[k & 1]; tag = f"r{k}"; base = U(slot[("w", n)])
        if n < 16:
            kk = k & 15; AC = ACC0 if n < 8 else ACC1
            def rd(n=n, s=s, wf=wf, tag=tag, kk=kk, base=base):
                r = []
                if n < 8:
                    for b in range(2):
                        pre, off = aX[s].at(U(slot[("x", n)]) + 2048*b)
                        r.append(pre + I(f"ds_read_b128 {q(XF(kk,b))}, {aX[s].reg} offset:{off}", tag=tag))
                for f in range(4):
                    r += trpair(aT[f&1], wf+4*f, base + (f>>1)*8192 + s*1024, 4096, tag)
                return r
            mf = [mf32(AC+(2*f+b)*4, wf+4*f, XF(kk,b), None if kk == 0 else AC+(2*f+b)*4, True) for f in range(4) for b in range(2)]
        else:
            def rd(s=s, wf=wf, tag=tag, base=base):
                r = []
                for h in range(2):
                    for f in range(2):
                        if ty == "T": r += trpair(aT[f], wf+8*h+4*f, base + s*8192 + h*1024, 4096, tag)
                        else:         r += trpair(aH, wf+8*h+4*f, base + f*8192 + s*4096 + h*1024, 2048, tag)
                return r
            mf = []
            for h in range(2):
                kk = 4*(n-16) + 2*s + h
                mf += [mf32(ACC3+(2*f+b)*4, wf+8*h+4*f, XF(kk,b), None if kk == 0 else ACC3+(2*f+b)*4, True) for f in range(2) for b in range(2)]
        ks.append((rd, mf))
    for t in range(18):
        k = 40 + t; wf = WF[k & 1]; tag = f"r{k}"; base = U(slot[("w", 20 + (t >> 1))]) + 1024*(t & 1)
        def rd(wf=wf, tag=tag, t=t, base=base):
            r = []
            if t == 0:
                b0 = base & ~0xffff
                for a in aT: a.bias = b0
                r.append(I(f"v_add_u32 {vT0}, {b0:#x}, {vS2}\nv_xor_b32 {vT1}, 32, {vT0}\nv_xor_b32 {vT2}, 64, {vT0}\nv_xor_b32 {vT3}, 0x60, {vT0}"))
            for f in range(4):
                r += trpair(aT[f], wf+4*f, base, 4096, tag)
            return r
        A = AREG_BASE[t]
        mf = [mf32(ACC1+(2*f+b)*4, wf+4*f, A+4*b, None if t == 0 else ACC1+(2*f+b)*4, True) for f in range(4) for b in range(2)]
        if t in (12, 13):
            mf[0] = [I(f"v_swap_b32 v{A+2}, v{A+4}\nv_swap_b32 v{A+3}, v{A+5}"), mf[0]]
        ks.append((rd, mf))
    def barrier(k):
        if k not in CFG["bars"]: return []
        tags = [f"{u[0]}{u[1]}" for u in vis if vis[u] == k] + [f"r{k-1}"] + extra_tags.get(k, [])
        w = Wait(*tags); w.fence = True
        return [w, Ins("s_barrier")] + stamp(5 + CFG["bars"].index(k))
    main = barrier(0) + flat(ks[0][0]())
    for i, (rd0, mfs) in enumerate(ks):
        rd = []
        if i + 1 < len(ks):
            main += barrier(i + 1)
            rd = ks[i+1][0]()
        if CFG["prio"]:
            nxt = min([b for b in CFG["bars"] if b > i + 1] + [len(ks) + 1])
            main += I(f"s_setprio {min(3, nxt - 2 - i)}")
        if CFG["onewait"] and i > 0: main.append(Wait(f"r{i}"))
        for m in mfs:
            main += flat([m])
            main += flat(rd[:2]); rd = rd[2:]
        assert not rd
    return main

def corr(acc, tiles, gap=3, TMP=TMP):
    it = []
    for n, (f, off) in enumerate(tiles):
        it += I(f"ds_read2_b32 {q(TMP+2*n,2)}, {vCT} offset0:{off} offset1:{off}")
    it += [[]] * gap
    m = []
    for b in range(2):
        for n, (f, off) in enumerate(tiles):
            d = acc + (2*f+b)*4
            m.append(mf16(d, TMP+2*n, vMn[b], d))
    return it, m

def silu(G, Uu, b):
    it = []
    for A, B in [(G[i:i+4], Uu[i:i+4]) for i in range(0, len(G), 4)]:
        it += [Ins(f"v_mul_f32 v{u}, v{g}, v{u}") for g, u in zip(A, B)]
        it += [Ins(f"v_mul_f32 v{g}, {vC1[b]}, v{g}") for g in A]
        it += [Ins(f"v_exp_f32 v{g}, v{g}") for g in A]
        it += [Ins(f"v_fma_f32 v{g}, v{g}, {vC2[b]}, {vC2[b]}") for g in A]
        it += [Ins(f"v_rcp_f32 v{g}, v{g}") for g in A]
        it += [Ins(f"v_mul_f32 v{u}, v{u}, v{g}") for g, u in zip(A, B)]
    return it
def hstore(reg, piece, tag):
    return [I(f"s_add_u32 {sT2}, {sHo}, {piece*1024:#x}") + I(f"buffer_store_dwordx4 {q(reg)}, {vL16}, {SWS}, {sT2} offen sc1", tag=tag)]
def flag(tag, sbase, imm):
    return [[paired(tag, [Wait(tag)])] + I(f"s_add_u32 {sT2}, {sbase}, {imm:#x}\ns_mov_b64 exec, 1\nbuffer_store_dwordx2 v[8:9], {vL16}, {SWS}, {sT2} offen sc1\ns_mov_b64 exec, -1")]
def ffn_epi(ACC0, c0, tag):
    rd, m = corr(ACC0, [(0, 0), (1, 16), (2, 32), (3, 48)])
    it = m + [[]] * 2
    for b in range(2):
        G = [ACC0+(2*f+b)*4+r for f in (0,1) for r in range(4)]
        Uu = [ACC0+(2*f+b)*4+r for f in (2,3) for r in range(4)]
        it += silu(G, Uu, b)
        d = ACC0 + b*4
        it += [Ins(f"v_cvt_pk_bf16_f32 v{d+i}, v{Uu[2*i]}, v{Uu[2*i+1]}") for i in range(4)]
        it += hstore(d, 4*c0 + b, tag)
    return rd, it
def lanemask(pred):
    m = sum(1 << l for l in range(64) if pred(l & 15, l >> 4))
    return m & 0xffffffff, m >> 32

def gen_type(ty):
    C = dict(CFG)
    for k in CFG:
        if k.endswith("_" + ty): C[k[:-2]] = CFG[k]
    P = []
    T = ty == "T"
    order, slot, earliest, vis = plan(ty)
    if T:
        P += I(f"""
s_lshl1_add_u32 {sKV}, {sCQ}, {sJ}
s_lshl_b32 {sC3}, {sKV}, 7
s_lshl_b32 {sT}, {sCH}, 10
s_add_u32 {sC1}, {sC3}, {sT}
s_add_u32 {sC1}, {sC1}, 1024
v_mul_u32_u24 {vWa}, 3072, v26
v_add_u32 {vWa}, {vWa}, v27
s_waitcnt lgkmcnt(0)
""")
        st1 = 3072; S1 = SP1; v2 = vWb; v3 = vWa
    else:
        P += I(f"""
s_mul_i32 {sC1}, {sCQ}, 7
s_add_u32 {sC1}, {sC1}, {sJ}
s_lshl_b32 {sC1}, {sC1}, 7
v_mul_u32_u24 {vWa}, 3584, v26
v_add_u32 {vWa}, {vWa}, v27
s_cmp_eq_u32 {sCH}, 0
s_waitcnt lgkmcnt(0)
s_cselect_b64 s[12:13], s[64:65], s[66:67]
""")
        st1 = 3584; S1 = SPF; v2 = vWa; v3 = vWb
    if C["stamps"]: P += I(f"v_mov_b32 v0, 0\nv_writelane_b32 v0, {sN0}, 0")
    if C.get("probe") == 0: P += I(f"s_mov_b32 s100, {sN0}")
    vW2 = v2; vFl = v3
    def unit_dma(u):
        kind, n = u; tag = f"{kind}{n}"; base = U(slot[u])
        ld = lambda vo, sr, i: I(f"buffer_load_dwordx4 {vo}, {sr}, {sD} offen offset:{1024*i} lds", tag=tag)
        if kind == "x":
            return [I(f"s_add_u32 m0, {sMX}, {base:#x}\ns_lshl1_add_u32 {sD}, {RHO[n]}, {sXo}") + ld(vX0, SX, 0), ld(vX1, SX, 1)]
        m0 = I(f"s_add_u32 m0, {sM}, {base:#x}")
        if n < 20:
            if n < 8:    vo, sr, sc, st, rho = vWa, S1, sC1, st1, RHO[n]
            elif n < 16: vo, sr, sc, st, rho = v2, SPF, sC2, 3584, RHO[n-8]
            else:        vo, sr, sc, st, rho = v3, S1, sC3, st1, RHO[2*(n-16)]
            return [m0 + I(f"s_mul_i32 {sD}, {rho}, {st}\ns_add_u32 {sD}, {sD}, {sc}") + ld(vo, sr, 0), I(f"s_add_u32 {sD}, {sD}, {32*st - 1024:#x}") + ld(vo, sr, 1)]
        out = []
        for i in range(2):
            t = 2*(n - 20) + i; g0, gn, kd, row = s2grp(t)
            sr = SW2 if kd == "w2" else SWO
            if gn == 4: sb, imm = (SWt if kd == "w2" else SOt)[t - g0], row * 1024
            else:       sb, imm = sW2o, (row + 32*(t - g0)) * 1024
            out.append(I(f"s_add_u32 m0, {sM}, {base + 1024*i:#x}\ns_add_u32 {sD}, {sb}, {imm:#x}") + ld(vW2, sr, 0))
        return out
    P += flat(unit_dma(("x", 0)) + unit_dma(("w", 0)))
    if T:
        P += I(f"s_or_b32 {sT}, s2, {sW}")
        P += only_if(sT, 0, I(f"s_or_b32 {sN0}, {sN0}, 1\nv_mov_b32 v30, {sN0}\nv_mov_b32 v31, {sN1}\ns_mov_b64 exec, 1\nglobal_store_dwordx2 {vL16}, v[30:31], {sDBG} sc1\ns_mov_b64 exec, -1"))
    P += I(f"""
s_lshl_b32 {sT}, {sCH}, 6
v_lshrrev_b32 {vT0}, 2, {vL16}
v_xor_b32 {vT0}, {sT}, {vT0}
v_and_b32 {vT0}, 0x60, {vT0}
v_bfe_u32 v25, {vL16}, 4, 2
v_lshl_add_u32 {vT0}, v25, 3, {vT0}
v_bfe_u32 v25, {vL16}, 6, 3
v_lshl_add_u32 {vT0}, v25, 7, {vT0}
v_lshrrev_b32 v25, 9, {vL16}
v_lshl_add_u32 {vT0}, v25, 11, {vT0}
v_xor_b32 {vT1}, 32, {vT0}
v_lshrrev_b32 v29, 8, {vL16}
v_bfe_u32 v25, {vL16}, 5, 3
v_xor_b32 v25, v29, v25
s_lshl_b32 {sT}, {sRB}, 12
v_lshl_add_u32 v25, v25, 4, {sT}
v_and_b32 v23, 0xf0, {vL16}
v_lshl_add_u32 {vXR0}, v23, 3, v25
v_xor_b32 {vXR1}, 64, {vXR0}
""")
    for h in range(1, C["pre_units"]):
        P += rho_calc(h) + flat(unit_dma(("x", h)) + unit_dma(("w", h)))
    for h in range(C["pre_units"], 8): P += rho_calc(h)
    P += I(f"""
v_mov_b32 v22, 0
s_lshl2_add_u32 {sCSo}, {sCQ}, {sJ}
s_lshl4_add_u32 {sOo}, {sR}, {sCSo}
s_lshl3_add_u32 {sOo}, {sOo}, {sW}
v_lshl_add_u32 {vCS}, v29, 10, v23
v_mul_u32_u24 v25, 768, v29
v_lshrrev_b32 {vCT}, 2, v23
s_mul_i32 {sT2}, {sCH}, 384
s_add_u32 {sT2}, {sT2}, {CT_OFF:#x}
v_add3_u32 {vCT}, {vCT}, v25, {sT2}
v_xor_b32 v29, {sPar}, v29
v_and_b32 v29, 1, v29
v_lshlrev_b32 v29, 4, v29
v_lshl_add_u32 v23, v23, 1, v29
""")
    if T: P += I(f"v_mul_u32_u24 {vWb}, 3584, v26\nv_add_u32 {vWb}, {vWb}, v27")
    else:
        P += I(f"""s_lshr_b32 {sT}, {sRB}, 1
s_and_b32 {sT2}, {sRB}, 1
s_lshl4_add_u32 {sT2}, {sT}, {sT2}
s_lshl_b32 {sT2}, {sT2}, 2
v_lshrrev_b32 {vWb}, 8, {vL16}
v_lshl_add_u32 {vWb}, {vWb}, 3, {sT2}
v_bfe_u32 v25, {vL16}, 6, 2
v_add_u32 {vWb}, {vWb}, v25
v_mul_u32_u24 {vWb}, 3584, {vWb}
v_lshrrev_b32 v25, 3, {vL16}
v_and_b32 v25, 0x20, v25
v_xor_b32 v25, v25, {vL16}
v_and_b32 v25, 0x30, v25
v_add_u32 {vWb}, {vWb}, v25""")

    bars = C["bars"]
    nb = lambda a: min(b for b in bars if banchor(b) >= a)
    pb = lambda a: max(b for b in bars if banchor(b) <= a)
    extra = {}
    for r_, lim in ((1, C["epi1"][0]), (2, C["epi2"][0]), (3, 312)):
        extra.setdefault(nb(C[f"cs{r_}chk"] + 1), []).append(f"ct{r_}")
        assert banchor(nb(C[f"cs{r_}chk"] + 1)) <= lim
    if T: extra.setdefault(nb(C["epi1"][1]), []).append("kvw")
    main = build_main(ty, slot, vis, extra)
    M = [main]
    def W(side, a0, a1=None):
        M[0] = weave(M[0], side, a0, a1 if a1 is not None else a0 + 1)

    KHB = 0x10001 if C["map2"] else 0x10000; KHX = 1 if C["map2"] == 1 else 0
    s = [I(f"s_mov_b32 s26, {WS_SIZE:#x}\ns_mov_b32 s27, 0x20000"), I("s_mov_b32 s18, 0x1c0000\ns_mov_b32 s19, 0x20000"),
         I("s_mov_b32 s22, 0x80000\ns_mov_b32 s23, 0x20000"), I("s_mov_b32 s30, 0x200000\ns_mov_b32 s31, 0x20000")]
    s += [I(f"""s_mul_i32 {sCSo}, {sCSo}, 48
s_add_u32 {sCSo}, {sCSo}, {sCH}
s_lshl_b32 {sCSo}, {sCSo}, 8
s_add_u32 {sCSo}, {sCSo}, {CS_OFF:#x}
s_and_b32 {sT}, {sRB}, 1
s_lshr_b32 {sT2}, {sRB}, 1
s_lshl_b32 {sStr}, {sT}, 5
s_lshl_b32 {sCSs}, {sT2}, 13
s_lshl2_add_u32 {sT2}, {sT2}, {sT}
s_lshl_b32 {sT2}, {sT2}, 7
s_add_u32 {sAo}, {sCSo}, {sT2}
s_lshl_b32 {sT}, {sT}, 9
s_add_u32 {sCSo}, {sCSo}, {sT}
s_lshr_b32 {sCS5}, {sR}, 2""")]
    if T:
        s += [I(f"s_cmp_eq_u32 {sCH}, 0\ns_cselect_b64 s[12:13], s[64:65], s[66:67]"),
              I(f"s_mul_i32 {sC2}, {sCQ}, 7\ns_add_u32 {sC2}, {sC2}, {sJ}\ns_lshl_b32 {sC2}, {sC2}, 7\ns_mul_i32 {sT}, {sCH}, {64*3072}\ns_add_u32 {sC3}, {sC3}, {sT}")]
    else:
        s += [I(f"s_add_u32 {sC2}, {sC1}, 256\ns_mul_i32 {sC3}, {sCQ}, 14\ns_add_u32 {sC3}, {sC3}, {sJ}\ns_lshl_b32 {sC3}, {sC3}, 6\ns_add_u32 {sC3}, {sC3}, 640")]
    s += [I(f"s_lshl_b32 {sSTo}, {sHo}, 9\ns_add_u32 {sSTo}, {sSTo}, {ST_OFF:#x}\ns_lshl2_add_u32 {sHo}, {sHo}, {sCQ}\ns_mul_i32 {sFo}, {sHo}, 640\ns_mul_i32 {sHo}, {sHo}, {36*1024}"),
          I(f"s_and_b32 {sT}, {sJ}, 1\ns_lshl1_add_u32 {sT}, {sT}, {sCH}\ns_lshl3_add_u32 {sFo}, {sT}, {sFo}\ns_lshl_b32 {sT}, {sT}, 10\ns_add_u32 {sHF}, {sHo}, {sT}\ns_add_u32 {sHo}, {sHF}, {sT}"),
          I(f"s_lshr_b32 {sT}, s2, 5\ns_lshl_b32 {sT}, {sT}, 7\ns_lshl_b32 {sT2}, {sRB}, 13\ns_add_u32 {sT}, {sT}, {sT2}\ns_bfe_u32 {sKH}, s2, {KHB:#x}\ns_xor_b32 {sKH}, {sKH}, {KHX}\ns_lshl1_add_u32 {sT2}, {sKH}, {sCH}\ns_mul_i32 {sW2o}, {sT2}, {448*1024}\ns_add_u32 {sW2o}, {sW2o}, {sT}\ns_lshl_b32 {sWOo}, {sT2}, 17\ns_add_u32 {sWOo}, {sWOo}, {sT}")]
    if T:
        s += [I(f"s_cmp_eq_u32 {sRB}, 3\ns_cselect_b32 s94, 0, 0xff00ff00\ns_mov_b32 s95, s94"),
              I(f"s_lshl3_add_u32 {sKV}, {sR}, {sKV}\ns_lshl1_add_u32 {sKV}, {sKV}, {sCH}\ns_lshl_b32 {sHF}, {sKV}, 7\ns_lshl_b32 {sKV}, {sKV}, 12\ns_add_u32 {sKV}, {sKV}, {KVH_OFF:#x}"),
              I(f"s_mov_b64 s[36:37], s[24:25]\ns_cmp_lg_u32 {sR}, 0\ns_cselect_b32 s38, {WS_SIZE:#x}, 0\ns_mov_b32 s39, 0x20000")]
    r2hi = f"s_bfe_u32 {sT2}, s2, 0x10002\ns_lshl1_add_u32 {sT2}, {sT2}, {sPar}" if C["map2"] else f"s_bfe_u32 {sT2}, s2, 0x20001"
    s += [I(f"""{r2hi}
s_bfe_u32 {sT}, s2, 0x20003
s_lshl2_add_u32 {sT2}, {sT2}, {sT}
s_lshl2_add_u32 {sT2}, {sT2}, {sRB}
s_lshl_b32 {sO2}, {sT2}, 5
s_lshl1_add_u32 {sT2}, {sT2}, {sKH}
s_lshl1_add_u32 {sT2}, {sT2}, {sCH}
s_mul_i32 {sA2}, {sT2}, {36*1024}
s_mul_i32 {sFl}, {sT2}, 640
s_add_u32 {sFl}, {sFl}, {FL_OFF:#x}
s_lshr_b32 {sT2}, s2, 5
s_add_u32 s98, {sT}, {sT2}
s_mov_b32 s99, {sWOo}
s_add_u32 {sO2}, {sO2}, {sCH}
s_lshl3_add_u32 {sO2}, {sO2}, {sT2}
s_lshl1_add_u32 {sO2}, {sO2}, {sKH}
s_lshl_b32 {sO2}, {sO2}, 6
s_lshl3_add_u32 {sC2s}, s2, {sW}
s_lshl_b32 {sC2s}, {sC2s}, 11""")]
    for i in range(4):
        s += [I(f"s_add_u32 {sT2}, s98, {i}\ns_and_b32 {sT2}, {sT2}, 3" if C["rot2"] else f"s_mov_b32 {sT2}, {i}") +
              I(f"s_lshl_b32 {sT2}, {sT2}, 11\ns_add_u32 {SA[i]}, {sA2}, {sT2}\ns_lshl4_add_u32 {SWt[i]}, {sT2}, {sW2o}\ns_lshl4_add_u32 {SOt[i]}, {sT2}, s99")]
    npro = max(7, C["setup_pro"])
    P += flat(s[:npro]) + stamp(1)
    SETUP = s[npro:]

    nonce_ld = f"global_load_dwordx2 v[8:9], v22, {sDBG} sc1"
    str_ = TMP + 4
    st_ld = f"buffer_load_dwordx4 {q(str_)}, v23, {SWS}, {sSTo} offen sc1"
    creg = {1: ACC1 + 24, 2: ACC0 + 8, 3: ACC0 + 8}
    cs_ld = lambda r_: f"s_add_u32 {sT2}, {sCSo}, {4096*(r_-1)}\nbuffer_load_dwordx4 {q(creg[r_])}, {vCS}, {SWS}, {sT2} offen sc1"
    cs_if = lambda r_, body: only_if(sRB, 2 if r_ < 3 else 1, body, "lt")
    poll = f"buffer_load_dwordx2 {q(vP,2)}, {vFl}, {SWS}, 0 offen sc1"
    chk = lambda mask: f"v_cmp_ne_u64 vcc, {sN}, {q(vP,2)}\ns_and_b64 vcc, vcc, {mask:#x}"
    def aload(t):
        A = AREG_BASE[t]; g0, gn, _, _ = s2grp(t)
        sb, imm = (SA[t - g0], 2048*g0) if gn == 4 else (sA2, 2048*t)
        return [I(f"s_add_u32 {sT2}, {sb}, {imm + 1024*b}\nbuffer_load_dwordx4 {q(A+4*b)}, {vL16}, {SWS}, {sT2} offen sc1") for b in range(2)]
    timed = []; aq = []
    def TM(a, bundles, cost=1):
        for b in bundles: timed.append([a, 0, b, cost, None])
    afree = lambda t: 272 if t < 4 else 264 + 8*((AREG_BASE[t] - 128) // 16) if t < 12 else 320 + 8*(t - 12 + 1)
    for r_ in (1, 2, 3): TM(C[f"cs{r_}ld"], [cs_if(r_, I(cs_ld(r_)))], 0.5)
    TM(C["stld"], [I(st_ld)])
    for e, (g0, gn, _, _) in enumerate(S2G):
        if C[f"p{e}"]: TM(C[f"p{e}"], [I(poll)])
        TM(C[f"c{e}"], spin(f"p{e}", poll, chk(0xf << (4*e))), 0)
        timed[-1][4] = ("chk", g0)
        for t in range(g0, g0 + gn):
            for b in aload(t): aq.append([max(C[f"c{e}"], afree(t)), 320 + 8*t, b, 1, ("a", g0)])
    q_units = []
    dm = f"s_mov_b32 m0, {DUMMY_OFF:#x}\n"
    for u in order:
        half = (not T) and u[0] == "w" and 16 <= u[1] < 20
        e = banchor(earliest[u]) if earliest[u] >= 0 else 0
        dl = banchor(vis[u])
        if u[1] < 8: e = max(e, dl - C["maxlead1"])
        if not (u[1] < C["pre_units"]):
            for b in unit_dma(u):
                q_units.append([e, dl, b, C["halfcost"] if half else 1, u])
        if u[0] == "w":
            if u[1] == C["pfA_at"]:
                q_units.append([0, dl, I(dm + f"s_mul_i32 {sT}, {sR}, {32*3584}\ns_add_u32 {sT}, {sT}, {sC2}\nbuffer_load_dword {v2}, {SPF}, {sT} offen lds"), 1, None])
            if u[1] == C["pfB_at"]:
                if T: q_units.append([0, dl, only_if(sCH, 0, I(dm + f"s_mul_i32 {sT}, {sR}, {32*3072}\ns_add_u32 {sT}, {sT}, {sC3}\nbuffer_load_dword {vWa}, {SP1}, {sT} offen lds")), 0.5, None])
                else: q_units.append([0, dl, only_if("s2", 192, I(dm + f"s_mul_i32 {sT}, {sR}, {32*3584}\ns_add_u32 {sT}, {sT}, {sC3}\nbuffer_load_dword {vWa}, {SPF}, {sT} offen lds"), "lt"), 0.5, None])
            if u[1] == C["nonce_at"]: q_units.append([0, dl, I(nonce_ld), 1, None])
            if u[1] == C["st_at"]:
                q_units.append([0, dl, I(f"s_lshl_b32 {sT2}, {sOo}, 10\nbuffer_load_dwordx4 v[28:31], {vL16}, {SX}, {sT2} offen"), 1, None])
            if u[1] == C["pf1_at"]:
                q_units.append([C["cold_at"], dl, I(dm + f"s_lshl3_add_u32 {sT}, s2, {sW}\ns_lshl_b32 {sT}, {sT}, 10\nbuffer_load_dword {vL16}, {SW2}, {sT} offen lds"), 1, None])
                if not T:
                    q_units.append([C["cold_at"], dl, I(dm + f"s_lshl3_add_u32 {sT}, s2, {sW}\ns_xor_b32 {sT}, {sT}, 0x600\ns_lshl_b32 {sT}, {sT}, 10\nbuffer_load_dword {vL16}, {SWO}, {sT} offen lds"), 0.5, None])
    pfq = []
    t = 0.0
    last_issue = {}; first_issue = {}
    alog = []
    midunit = False
    timed.sort(key=lambda z: z[0])
    done_chk = set(); late = []; lastfix = 0
    while timed or q_units or pfq or aq:
        heads = [qq for qq in (timed, q_units) + (() if midunit else (pfq,)) if qq]
        if aq and aq[0][4][1] in done_chk: heads.append(aq)
        if timed and timed[0][3] == 0 and timed[0][0] <= t:
            a, dl, b, cost, u = timed.pop(0); W([b], max(a, lastfix)); done_chk.add(u[1]); continue
        t = max(t, min(qq[0][0] for qq in heads))
        av = [qq for qq in heads if qq[0][0] <= t]
        qq = min(av, key=lambda z: z[0][1])
        a, dl, b, cost, u = qq.pop(0)
        an = min(int(t), 463)
        W([b], an)
        if qq is timed:
            late.append(an - a); lastfix = an
            if u: done_chk.add(u[1])
        elif qq is aq: alog.append(dl - an)
        elif u:
            midunit = u not in first_issue
            last_issue[u] = an; first_issue.setdefault(u, an)
        pace = C["pace1"] if ("w", 7) not in last_issue else C["pace2"] if t < C["pace3_from"] else C["pace3"]
        t += pace * cost
    assert max(late) <= 8, late
    for r_ in (1, 2, 3): assert C[f"cs{r_}ld"] + 10 <= C[f"cs{r_}chk"]
    assert C["stld"] + 10 <= C["stchk"]
    sys.stderr.write(f"{ty} A-load slack: {alog}\n")
    assert min(alog) > 0
    sys.stderr.write(f"{ty} slack: " + " ".join(f"{u[0]}{u[1]}:{banchor(vis[u]) - last_issue[u]}" for u in last_issue) + "\n")
    assert all(banchor(vis[u]) > last_issue[u] for u in last_issue)
    w2_first = first_issue[("w", 20)]; p2_last = last_issue[("w", 15)]; p3_last = last_issue[("w", 19)]; x_last = last_issue[("x", 7)]
    if SETUP: W(SETUP, *C["setup"])
    assert first_issue[("w", 8)] >= C["setup"][1]

    def cs_store(r_, h, acc, ad):
        body = I(f"s_lshl3_add_u32 {sT2}, {RHO[h]}, {sAo}\ns_add_u32 {sT2}, {sT2}, {4096*(r_-1)}\ns_mov_b64 exec, 0xffff\nbuffer_store_dwordx2 {q(acc,2)}, v{ad}, {SWS}, {sT2} offen sc1\ns_mov_b64 exec, -1")
        pre = I(f"s_lshr_b32 {sT2}, {sRB}, 1\ns_or_b32 {sCS5}, {sCS5}, {sT2}") if r_ == 3 else []
        return I(f"v_mov_b32 v{acc+1}, {vN0}\nv_lshrrev_b32 v{ad}, 1, {vL16}") + [pre + only_if(sCS5, 0, body)]
    ones = lambda r: I("\n".join(f"v_mov_b32 v{r+i}, 0x3f803f80" for i in range(4)))
    wide_ad = lambda ad, n: [I(f"v_and_b32 v{ad}, 0xffff, {vT0}\nv_xor_b32 v{ad}, {sStr}, v{ad}\ns_add_u32 {sT2}, {sCSs}, {U(slot[('w', n)]):#x}\nv_add_u32 v{ad}, {sT2}, v{ad}")]
    trr = lambda d, ad, off, de, tag: I(f"ds_read_b64_tr_b16 {q(d,2)}, v{ad} offset:{off}\nds_read_b64_tr_b16 {q(d+2,2)}, v{ad} offset:{off+de}", tag=tag)
    n1 = C["cs1_u"]; assert n1 % 2 == 0
    ad, on, ac = ACC1 + 28, ACC1 + 16, ACC1 + 20
    for i in range(2):
        s = wide_ad(ad, n1 + i)
        for s_ in range(2): s += trr(ACC1 + 8*i + 4*s_, ad, 1024*s_, 4096, f"r{2*(n1+i)+1}")
        if i == 0: s += ones(on)
        W(s, 16*(n1+i) - 3, 16*(n1+i) + 5)
    s = [mf32(ac, on, ACC1 + 4*f, ac if f else None) for f in range(4)]
    s += spin("nonce", nonce_ld, f"v_cmp_eq_u32 vcc, 0, {vN0}")
    s += I(f"v_readfirstlane_b32 {sN0}, {vN0}\nv_readfirstlane_b32 {sN1}, {vN1}")
    s += cs_store(1, n1, ac, ad)
    a_ = 16*(n1+1) + 6
    W(s, a_, a_ + 9)
    assert a_ + 9 <= C["stat"][1]
    s = stats_compute(240) + I(f"v_mov_b32 v25, {vN0}\nv_mov_b32 v27, {vN0}")
    s += [I(f"s_lshl_b32 {sT2}, {sOo}, 4\ns_add_u32 {sT2}, {sT2}, {ST_OFF:#x}\ns_mov_b32 exec_lo, 0\ns_mov_b32 exec_hi, 0x80000000\nbuffer_store_dwordx4 v[24:27], v22, {SWS}, {sT2} offen sc1\ns_mov_b64 exec, -1")]
    W(s, *C["stat"])
    n2 = C["cs2_u"]; assert n2 % 2 == 0
    ad, on, ac, fb = 19, TMP, TMP + 4, ACC0 + 24
    s = ones(on)
    for i in range(2):
        s += wide_ad(ad, n2 + i)
        for s_ in range(2):
            s += [trr(fb, ad, 1024*s_, 4096, f"r{2*n2+3}"), [], [], mf32(ac, on, fb, ac if (i or s_) else None)]
    W(s, *C["cs2pub"])
    assert banchor(vis[("w", n2+1)]) <= C["cs2pub"][0] and C["cs2pub"][1] <= banchor(min(b for b in bars if b > 2*n2+3))
    W(cs_store(2, n2 - 8, ac, ad), C["cs2pub"][1] + 2, C["cs2pub"][1] + 5)
    b16 = U(slot[("w", 16)])
    if T:
        s = [I(f"v_and_b32 v{ad}, 0xffff, {vT0}\nv_xor_b32 v{ad}, {sStr}, v{ad}\nv_add_u32 v{ad}, {b16:#x}, v{ad}")]
        for f in range(4): s += trr(ACC3 + 4*f, ad, 8192*(f>>1) + 1024*(f&1), 4096, "r33")
    else:
        s = [I(f"s_lshl_b32 {sT2}, {sStr}, 8\ns_add_u32 {sT2}, {sT2}, {b16:#x}\nv_add_u32 v{ad}, {sT2}, {vTH}")]
        for f in range(4): s += trr(ACC3 + 4*f, ad, 4096*(f>>1) + 1024*(f&1), 2048, "r33")
    s += [[]] * 2
    s += [mf32(ac, on, ACC3 + 4*f, ac if f else None) for f in range(4)] + [[]] * 4
    s += cs_store(3, 0, ac, ad)
    assert C["cs3pub"][0] >= C["epi1"][1] and C["cs3pub"][1] <= 247
    W(s, *C["cs3pub"])
    hilo = lambda a: I(f"""v_cvt_pk_bf16_f32 v{a+1}, v{a}, v{a+2}
v_and_b32 v{a+3}, 0xffff0000, v{a+1}
v_lshlrev_b32 v{a+1}, 16, v{a+1}
v_sub_f32 v{a+3}, v{a+2}, v{a+3}
v_sub_f32 v{a+1}, v{a}, v{a+1}
v_cvt_pk_bf16_f32 v{a}, v{a}, v{a+1}
v_cvt_pk_bf16_f32 v{a+1}, v{a+2}, v{a+3}""")
    for r_ in (1, 2, 3):
        a = creg[r_]
        s = spin(f"cs{r_}", cs_ld(r_), f"v_min3_u32 v{a+4}, v{a+1}, v{a+3}, {vN0}\nv_max3_u32 v{a+5}, v{a+1}, v{a+3}, {vN0}\nv_cmp_ne_u32 vcc, v{a+4}, v{a+5}")
        s += hilo(a)
        s += I(f"v_bfe_u32 v{a+4}, {vL16}, 4, 4\nv_add_u32 v{a+4}, {sStr}, v{a+4}\nv_lshl_add_u32 v{a+4}, v{a+4}, 2, {vCT}")
        s += I(f"ds_write_b64 v{a+4}, {q(a,2)} offset:{256 if r_ == 3 else 0}", tag=f"ct{r_}")
        W([paired(f"cs{r_}", cs_if(r_, s), True)], C[f"cs{r_}chk"])
    assert C["cs2ld"] >= C["epi1"][1]
    MX = vC2[1]
    s = spin("st", st_ld, f"v_min3_u32 v{vP}, v{str_+1}, v{str_+3}, {vN0}\nv_max3_u32 {MX}, v{str_+1}, v{str_+3}, {vN0}\nv_cmp_ne_u32 vcc, v{vP}, {MX}")
    m, sd = str_, str_ + 2
    s += I(f"""v_rcp_f32 v{m+1}, v{sd}
v_mul_f32 {vC2[0]}, v{sd}, v{sd}
v_mul_f32 {vC1[0]}, {LOG2E | 0x80000000:#x}, v{m+1}
v_cvt_pk_bf16_f32 v{vMn[0]}, -v{m}, -v{m}
v_mov_b32 {vC2[1]}, {vC2[0]}
v_mov_b32 {vC1[1]}, {vC1[0]}
v_mov_b32 v{vMn[1]}, v{vMn[0]}""")
    if C["mimic"]:
        s += I(f"v_mov_b32 v{vMn[0]+1}, 0\nv_mov_b32 v{vMn[1]+1}, 0")
    else:
        s += I(f"v_lshlrev_b32 v{m+1}, 16, v{vMn[0]}\nv_add_f32 v{m}, v{m}, v{m+1}\nv_cvt_pk_bf16_f32 v{vMn[0]+1}, -v{m}, -v{m}\nv_mov_b32 v{vMn[1]+1}, v{vMn[0]+1}\ns_nop 0\nv_permlane16_swap_b32 v{vMn[0]+1}, v{vMn[1]+1}")
    s += I(f"v_permlane16_swap_b32 {vC2[0]}, {vC2[1]}\nv_permlane16_swap_b32 {vC1[0]}, {vC1[1]}\nv_permlane16_swap_b32 v{vMn[0]}, v{vMn[1]}")
    W(s, C["stchk"], C["epi1"][0])

    if T:
        s = [I(f"s_lshl_b32 {sT2}, {sCH}, 6\nv_xor_b32 {vVw}, {sT2}, {vL16}\nv_and_b32 {vVw}, 0x60, {vVw}"),
             I(f"v_lshrrev_b32 {vKa}, 8, {vL16}\nv_lshl_add_u32 {vVw}, {vKa}, 3, {vVw}"),
             I(f"v_and_b32 {vKa}, 0x80, {vL16}\nv_lshl_add_u32 {vVw}, {vKa}, 4, {vVw}"),
             I(f"v_and_b32 {vKa}, 0x70, {vL16}\nv_lshl_add_u32 {vVw}, {vKa}, 3, {vVw}"),
             I(f"s_lshl_b32 {sT2}, {sRB}, 12\ns_add_u32 {sT2}, {sT2}, {V_OFF:#x}\nv_add_u32 {vVw}, {sT2}, {vVw}"),
             I(f"s_lshr_b32 {sT2}, {sMX}, 1\ns_add_u32 {sT2}, {sT2}, {K_OFF:#x}\nv_lshl_add_u32 {vKa}, {vKa}, 1, {sT2}\ns_movk_i32 {sT2}, 0x300\nv_and_or_b32 {vKa}, {vL16}, {sT2}, {vKa}")]
    else:
        s = [I(f"s_lshl_b32 {sT2}, {sCH}, 5\nv_lshrrev_b32 {vTH}, 3, {vL16}\nv_xor_b32 {vTH}, {sT2}, {vTH}\nv_and_b32 {vTH}, 0x20, {vTH}"),
             I(f"v_bfe_u32 v21, {vL16}, 4, 2\nv_lshl_add_u32 {vTH}, v21, 3, {vTH}"),
             I(f"v_and_b32 v21, 0x3c0, {vL16}\nv_add_u32 {vTH}, {vTH}, v21")]
    assert x_last + 1 < 100
    W(s, x_last + 1, 100)
    assert p2_last + 2 < w2_first and p3_last + 6 < C["p0"]
    W([I(f"v_and_b32 {vW2}, 0x70, {vW2}\nv_lshrrev_b32 {vS2}, 7, {vL16}\nv_lshl_add_u32 {vW2}, {vS2}, 10, {vW2}")], max(p2_last + 1, 124))
    s = [I(f"v_min_u32 {vFl}, 0x130, {vL16}\nv_bfe_u32 {vS2}, {vFl}, 4, 2\nv_lshl_add_u32 {vS2}, {vS2}, 3, {sFl}"),
         I(f"v_and_b32 {vFl}, 0x1c0, {vFl}\nv_lshl_add_u32 {vFl}, {vFl}, 1, {vS2}"),
         I(f"s_xor_b32 {sT2}, {sKH}, {sCH}\ns_lshl_b32 {sT2}, {sT2}, 6\nv_and_b32 {vS2}, 0xffff, {vT0}\nv_xor_b32 {vS2}, {sT2}, {vS2}\n"
           f"s_lshl_b32 {sT2}, {sCH}, 13\nv_add_u32 {vS2}, {sT2}, {vS2}")]
    W(s, C["p0"] - 5, C["p0"] - 1)

    if T:
        rd, mm = corr(ACC0, [(2, 32), (3, 48), (0, 0), (1, 16)])
        Kp = ACC0; Vp = ACC3; Qp = ACC0 + 8; rr = [vP, vP + 1]
        NISC = 0xbf317218
        s = rd + mm
        s += I(f"v_mul_f32 v{rr[0]}, {NISC:#x}, {vC1[0]}\nv_mul_f32 v{rr[1]}, {NISC:#x}, {vC1[1]}\nv_xor_b32 v19, 32, {vVw}")
        for base in (Vp, Kp):
            for it in range(4):
                a = base + 4*it; d = base + 2*it
                s += [Ins(f"v_mul_f32 v{a+r}, v{rr[it&1]}, v{a+r}") for r in range(4)]
                s += [Ins(f"v_cvt_pk_bf16_f32 v{d+i}, v{a+2*i}, v{a+2*i+1}") for i in range(2)]
                if base == Vp: s += I(f"ds_write_b64 {vVw if it < 2 else 'v19'}, {q(d,2)} offset:{4096+1024*(it&1)}", tag="kvw")
            if base == Vp: nv = len(s)
        s += [I(f"s_mov_b64 exec, {sExK}") + I(f"ds_write_b128 {vKa}, {q(Kp)} offset:2048\nds_write_b128 {vKa}, {q(Kp+4)} offset:2064", tag="kvw") + I("s_mov_b64 exec, -1")]
        s += [only_if(sRB, 3, I("\n".join(f"buffer_store_dwordx4 {q(r)}, {vL16}, {SWS}, {sKV} offen offset:{1024*i} sc1" for i, r in enumerate((Kp, Kp+4, Vp, Vp+4))), tag="hs"))]
        assert C["epi1"][0] + (nv * (C["epi1"][1] - C["epi1"][0])) // len(s) < C["cs2pub"][0]
        W(s, *C["epi1"])
        W([paired("e1", only_if(sRB, 3, flag("hs", sHF, HF_OFF)[0]))], C["f1"])
        e2c, e2v = 4, 2
    else:
        rd, it = ffn_epi(ACC0, 0, "e1")
        s = rd + it
        assert C["epi1"][0] + ((len(s) - 52) * (C["epi1"][1] - C["epi1"][0])) // len(s) < C["cs2pub"][0] + 3
        W(s, *C["epi1"])
        W(flag("e1", sFo, FL_OFF), C["f1"])
        e2c, e2v = 2, 1
    rd, it = ffn_epi(ACC1, e2c, "e2")
    W(rd, C["epi2"][0] - 6, C["epi2"][0] - 1)
    W(it, *C["epi2"])
    W(flag("e2", sFo, FL_OFF + e2v*128), C["f2"])
    W(stamp(2) or [[]], 319)
    if T:
        B = 160
        bc, bp, Sc, Sp = B, B+4, B+8, B+24
        HD = 176
        hp = f"s_add_u32 {sT2}, {sHF}, {HF_OFF - 16*128:#x}\nbuffer_load_dwordx2 {q(Qp+6,2)}, off, {SHL}, {sT2} sc1"
        W([only_if(sRB, 0, I(hp))], C["hpoll"])
        s = spin("halo", hp, f"v_cmp_ne_u64 vcc, {sN}, {q(Qp+6,2)}\ns_cmp_lg_u32 s38, 0\ns_cselect_b64 vcc, vcc, 0")
        s += I(f"s_sub_u32 {sT2}, {sKV}, {16*4096}\n" + "\n".join(f"buffer_load_dwordx4 {q(HD+4*i)}, {vL16}, {SHL}, {sT2} offen offset:{1024*i} sc1" for i in range(4)))
        assert C["hchk"] >= 288
        W([paired("halo", only_if(sRB, 0, s), True)], C["hchk"])
        M01 = TMP+1; M23 = TMP+2; cqr = [TMP+3, TMP+4]; ta = TMP+5; tb = TMP+6; ninf = TMP+7
        s = I(f"v_mov_b32 v{ninf}, 0xff800000")
        s += [I(f"s_or_b32 {sT2}, {sR}, {sRB}\ns_cmp_eq_u32 {sT2}, 0\ns_cselect_b32 {sThr}, -1, 0")]
        for r in range(4):
            lo, hi = lanemask(lambda j, qq: not (0 <= j - 4*qq - r <= 7))
            s += [I(f"s_mov_b32 s98, {lo:#x}\ns_mov_b32 s99, {hi:#x}\nv_cndmask_b32 v{bc+r}, 0, v{ninf}, {sTmp2}")]
        for r in range(4):
            lo, hi = lanemask(lambda j, qq: not (j - 4*qq - r <= -9))
            s += [I(f"s_or_b32 s98, {sThr}, {lo:#x}\ns_or_b32 s99, {sThr}, {hi:#x}\nv_cndmask_b32 v{bp+r}, 0, v{ninf}, {sTmp2}")]
        s += I(f"v_mov_b32 v{ninf}, 0xffff0000")
        for Mr, r in ((M01, 0), (M23, 2)):
            lo, hi = lanemask(lambda j, qq: j - 4*qq - r - 1 < 0)
            s += [I(f"s_mov_b32 s98, {lo:#x}\ns_mov_b32 s99, {hi:#x}\nv_cndmask_b32 v{Mr}, 0, v{ninf}, {sTmp2}")]
            lo, hi = lanemask(lambda j, qq: j - 4*qq - r < 0)
            s += [I(f"s_mov_b32 s98, {lo:#x}\ns_mov_b32 s99, {hi:#x}\nv_cndmask_b32 v{Mr}, v{Mr}, -1, {sTmp2}")]
        s += I(f"v_mul_f32 v{cqr[0]}, 0xbe800000, {vC1[0]}\nv_mul_f32 v{cqr[1]}, 0xbe800000, {vC1[1]}")
        s += [I(f"s_lshl_b32 {sT2}, {sRB}, 12\ns_add_u32 {sT2}, {sT2}, {V_OFF:#x}\nv_and_b32 v{ta}, 0xffff, {vT0}\nv_add_u32 v{ta}, {sT2}, v{ta}")]
        s += I(f"v_xor_b32 v{tb}, 32, v{ta}\nv_xor_b32 v{ninf}, 32, {vVw}")
        assert C["attpre"][0] >= 280 and C["attpre"][1] <= C["hw"] <= 311
        W(s, *C["attpre"])
        W([only_if(sRB, 0, I("\n".join(f"ds_write_b64 {vVw if it < 2 else f'v{ninf}'}, {q(HD+8+2*it,2)} offset:{1024*(it&1)}" for it in (3, 2, 1, 0))) +
              I(f"s_mov_b64 exec, {sExK}") + I(f"ds_write_b128 {vKa}, {q(HD)}\nds_write_b128 {vKa}, {q(HD+4)} offset:16") + I("s_mov_b64 exec, -1"))], C["hw"])
        rd, mm = corr(ACC3, [(0, 64), (1, 80)], 0, Sp)
        W(rd, 313, 316)
        s = mm + [[]] * 3
        for it in range(4):
            s += [Ins(f"v_cvt_pk_bf16_f32 v{Qp+2*it+i}, v{ACC3+4*it+2*i}, v{ACC3+4*it+2*i+1}") for i in range(2)]
        for it in range(4): s.append(mf16(Sc+4*it, Kp+2*it, Qp+2*it, bc))
        s += I(f"ds_read_b128 {q(Kp)}, {vKa}\nds_read_b128 {q(Kp+4)}, {vKa} offset:16")
        Vf = ACC3
        for it in range(4):
            hh, b = it >> 1, it & 1
            s += I(f"ds_read_b64_tr_b16 {q(Vf+4*it,2)}, v{ta+hh} offset:{1024*b}\nds_read_b64_tr_b16 {q(Vf+4*it+2,2)}, v{ta+hh} offset:{4096+1024*b}")
        mx = [bc, bc+1, bc+2, bc+3]
        for half in range(2):
            for k in range(2): s.append(mf16(Sp+4*k, Kp+2*(2*half+k), Qp+2*(2*half+k), bp))
            s += [[]] * 5
            for k in range(2):
                it = 2*half + k
                s += [Ins(f"v_max_f32 v{Sc+4*it+r}, v{Sc+4*it+r}, v{Sp+4*k+r}") for r in range(4)]
                s += I(f"v_max3_f32 v{mx[it]}, v{Sc+4*it}, v{Sc+4*it+1}, v{Sc+4*it+2}\nv_max_f32 v{mx[it]}, v{mx[it]}, v{Sc+4*it+3}")
        m0_, m2_, m1_, m3_ = mx
        s += I(f"""v_permlane32_swap_b32 v{m0_}, v{m1_}
v_permlane32_swap_b32 v{m2_}, v{m3_}
v_max_f32 v{m0_}, v{m0_}, v{m1_}
v_max_f32 v{m2_}, v{m2_}, v{m3_}
v_mov_b32 v{Sp}, 0x3f803f80
v_mov_b32 v{Sp+1}, 0x3f803f80
v_permlane16_swap_b32 v{m0_}, v{m2_}
v_max_f32 v{m0_}, v{m0_}, v{m2_}
v_mov_b32 v{m2_}, v{m0_}
v_mov_b32 v{Sp+2}, 0x3f803f80
v_mov_b32 v{Sp+3}, 0x3f803f80
v_permlane16_swap_b32 v{m0_}, v{m2_}
v_mul_f32 v{m0_}, v{cqr[0]}, v{m0_}
v_mul_f32 v{m2_}, v{cqr[1]}, v{m2_}
v_mov_b32 v{m1_}, v{m0_}
v_mov_b32 v{m3_}, v{m2_}""")
        s += [[]]
        s += I(f"v_permlane32_swap_b32 v{m0_}, v{m1_}\nv_permlane32_swap_b32 v{m2_}, v{m3_}")
        Ob = ACC0
        seq = (0, 2, 1, 3)
        for n, it in enumerate(seq):
            a = Sc + 4*it
            s += [Ins(f"v_fma_f32 v{a+r}, v{a+r}, v{cqr[it&1]}, -v{mx[it]}") for r in range(4)]
            s += [Ins(f"v_exp_f32 v{a+r}, v{a+r}") for r in range(4)]
            s += I(f"v_cvt_pk_bf16_f32 v{bp}, v{a}, v{a+1}\nv_cvt_pk_bf16_f32 v{bp+1}, v{a+2}, v{a+3}")
            s += I(f"v_and_b32 v{a}, v{M01}, v{bp}\nv_and_b32 v{a+1}, v{M23}, v{bp+1}\nv_bfi_b32 v{a+2}, v{M01}, 0, v{bp}\nv_bfi_b32 v{a+3}, v{M23}, 0, v{bp+1}")
            if n:
                p_ = seq[n-1]
                s += [mf32(Ob+4*p_, Vf+4*p_, Sc+4*p_, None), mf32(Vf+4*p_, Sp, Sc+4*p_, None)]
        s += [[], mf32(Ob+12, Vf+12, Sc+12, None), mf32(Vf+12, Sp, Sc+12, None)]
        for it in seq:
            hh, b = it >> 1, it & 1
            s += [Ins(f"v_rcp_f32 v{Vf+4*it}, v{Vf+4*it}")]
            s += [Ins(f"v_mul_f32 v{Ob+4*it+r}, v{Ob+4*it+r}, v{Vf+4*it}") for r in range(4)]
            s += [Ins(f"v_cvt_pk_bf16_f32 v{Sc+4*b+2*hh+i}, v{Ob+4*it+2*i}, v{Ob+4*it+2*i+1}") for i in range(2)]
            if hh: s += hstore(Sc+4*b, 28 + b, "el")
        if C["att"] is None: W([flat(s)] + stamp(40), 319); lend = 320
        else: W(s + stamp(40), *C["att"]); lend = C["att"][1]
        last_ev = 4
    else:
        rd, mm = corr(ACC3, [(0, 64), (1, 80)], 0)
        W(rd, 313, 316)
        s = mm + [[]] * 3
        for b in range(2):
            G = [ACC3+b*4+r for r in range(4)]; Uu = [ACC3+(2+b)*4+r for r in range(4)]
            s += silu(G, Uu, b)
            s += [Ins(f"v_cvt_pk_bf16_f32 v{ACC0+2*b+i}, v{Uu[2*i]}, v{Uu[2*i+1]}") for i in range(2)]
        s += [I(f"s_add_u32 {sT2}, {sHF}, {24*1024}") + I(f"buffer_store_dwordx4 {q(ACC0)}, {vL16}, {SWS}, {sT2} offen sc1", tag="el")]
        if C["lepi"] is None: W([flat(s)] + stamp(40), 319); lend = 320
        else: W(s + stamp(40), *C["lepi"]); lend = C["lepi"][1]
        last_ev = 3
    W(flag("el", sFo, FL_OFF + last_ev*128), C["lflag"])
    ra = ACC0 + 20
    live = [slot[("w", n)] for n in range(20, 29) if 2*n + 1 >= max(bars)]
    red0 = [s_ for s_ in range(7) if s_ not in live and s_ + 1 not in live]
    need_bar = not red0
    rbase = U(red0[0]) if red0 else 0
    SEL = RHO[:6]
    s = [I(f"v_and_b32 v{ra}, 0xf0, {vL16}\nv_lshlrev_b32 v{ra}, 7, v{ra}\nv_bfe_u32 v{ra+1}, {vL16}, 8, 1"),
         I(f"v_lshl_add_u32 v{ra}, v{ra+1}, 5, v{ra}\nv_lshrrev_b32 v{ra+1}, 9, {vL16}\nv_lshl_add_u32 v{ra}, v{ra+1}, 4, v{ra}"),
         I(f"buffer_load_dwordx4 {q(ACC0+16)}, v{ra}, {SX}, {sO2} offen"),
         I(f"s_lshl_b32 {sT2}, {sW}, 12\ns_add_u32 {sT2}, {sT2}, {rbase}\nv_add_u32 v{ra+2}, {sT2}, {vL16}"),
         I(f"s_xor_b32 {sT2}, {sW}, 4\ns_lshl_b32 {sT2}, {sT2}, 12\ns_add_u32 {sT2}, {sT2}, {rbase}\nv_add_u32 v{ra+3}, {sT2}, {vL16}"),
         I("\n".join(f"s_mov_b32 {SEL[k]}, {0x07060500 + k:#x}" for k in range(4))),
         I(f"s_mov_b32 {SEL[4]}, 0x0c0c0400\ns_mov_b32 {SEL[5]}, 0x04000c0c\ns_add_u32 {sC2s}, {sC2s}, {XC_OFF:#x}\ns_xor_b32 {sAo}, {sC2s}, {0x8000 if C['map2'] else 0x4000:#x}")]
    W(s, max(352, lend + 2), max(352, lend + 2) + 12)
    xr = ACC0
    s = I(f"v_permlane16_swap_b32 v{ACC0+16}, v{ACC0+18}\nv_permlane16_swap_b32 v{ACC0+17}, v{ACC0+19}")
    for i in range(4):
        s += I(f"v_lshlrev_b32 v{xr+2*i}, 16, v{ACC0+16+i}\nv_and_b32 v{xr+2*i+1}, 0xffff0000, v{ACC0+16+i}")
    W(s, 440, 450)
    P += M[0]
    P += stamp(3)
    E = []
    if need_bar: E += [Ins("s_barrier")]
    for f in (2, 3, 0, 1):
        E += I(f"ds_write_b128 v{ra+2}, {q(ACC1+(2*f+1)*4)} offset:{f*1024}", tag="red")
    E += [Wait("red"), Ins("s_barrier")]
    RD = 160
    for f in (2, 3, 0, 1):
        E += I(f"ds_read_b128 {q(RD+4*f)}, v{ra+3} offset:{f*1024}")
    for f in (2, 3):
        a = ACC1 + 8*f
        for r in range(4): E += I(f"v_add_f32 v{a+r}, v{a+r}, v{RD+4*f+r}")
        for r in range(4): E += I(f"v_perm_b32 v{a+r}, v{a+r}, {vN0}, {SEL[r]}")
        E += I(f"buffer_store_dwordx4 {q(a)}, {vL16}, {SWS}, {sC2s} offen offset:{(f-2)*1024} sc1")
    E += stamp(27)
    for f in (0, 1):
        for r in range(4): E += I(f"v_add_f32 v{xr+4*f+r}, v{xr+4*f+r}, v{ACC1+8*f+r}")
        for r in range(4): E += I(f"v_add_f32 v{xr+4*f+r}, v{xr+4*f+r}, v{RD+4*f+r}")
    G = 176
    xl = f"buffer_load_dwordx4 {q(G)}, {vL16}, {SWS}, {sAo} offen sc1\nbuffer_load_dwordx4 {q(G+4)}, {vL16}, {SWS}, {sAo} offen offset:1024 sc1"
    xc = ""
    for k in range(2):
        g = G + 4*k
        xc += f"v_perm_b32 v{G+8+2*k}, v{g+1}, v{g}, {SEL[4]}\nv_perm_b32 v{G+9+2*k}, v{g+3}, v{g+2}, {SEL[5]}\nv_or_b32 v{G+8+2*k}, v{G+8+2*k}, v{G+9+2*k}\n"
    xc += f"v_min3_u32 v{G+9}, v{G+8}, v{G+10}, {vN0}\nv_max3_u32 v{G+11}, v{G+8}, v{G+10}, {vN0}\nv_cmp_ne_u32 vcc, v{G+9}, v{G+11}"
    if C["xdelay"]: E += I("s_waitcnt vmcnt(0)")
    E += I(xl) + flat(spin("x", xl, xc))
    for i in range(8): E += I(f"v_and_b32 v{G+i}, 0xffffff00, v{G+i}")
    for i in range(8): E += I(f"v_add_f32 v{xr+i}, v{xr+i}, v{G+i}")
    for i in range(4):
        E += I(f"v_cvt_pk_bf16_f32 v{xr+8+i}, v{xr+2*i}, v{xr+2*i+1}")
    E += I(f"v_permlane16_swap_b32 v{xr+8}, v{xr+10}\nv_permlane16_swap_b32 v{xr+9}, v{xr+11}")
    E += I(f"buffer_store_dwordx4 {q(xr+8)}, v{ra}, {SOUT}, {sO2} offen {C['out_flags']}")
    P += E
    if C["stamps"]:
        P += stamp(41) + I("s_waitcnt vmcnt(0)") + stamp(4)
        P += I(f"""s_add_u32 s24, s24, {STAMP_OFF:#x}
s_addc_u32 s25, s25, 0
s_lshl3_add_u32 {sT}, s2, {sW}
s_lshl_b32 {sT}, {sT}, 8
v_lshrrev_b32 v24, 2, {vL16}
v_add_u32 v24, {sT}, v24
global_store_dword v24, v0, s[24:25]""")
    if C.get("probe") is not None:
        P += stamp(41) + I("s_waitcnt vmcnt(0)") + stamp(4)
        l = newlab("pr")
        r = Ins(";raw")
        src = sN0 if C["probe"] == -1 else "s100"
        r.text = (f"s_waitcnt lgkmcnt(0)\ns_add_u32 {sT}, {src}, 6000\n{l}:\ns_sleep 2\ns_memrealtime s[98:99]\ns_waitcnt lgkmcnt(0)\n"
                  f"s_sub_u32 {sT2}, s98, {sT}\ns_cmp_lt_i32 {sT2}, 0\ns_cbranch_scc1 {l}")
        P += [r]
    P += I("s_endpgm")
    return P

def generate():
    global slow
    slow = []
    lab[0] = 0
    texts = []
    for ty in ("T", "F"):
        prog, st = finalize(common_prologue() + flat(gen_type(ty)))
        pend = {100: None, 0: None}; cur = 100
        for x in prog:
            if hasattr(x, "sid"):
                x.text = (f"v_writelane_b32 v0, s{cur}, {pend[cur]}\n" if pend[cur] is not None else "") + f"s_memrealtime s[{cur}:{cur+1}]"
                pend[cur] = x.sid
                if x.sid in (41, 4, 1):
                    x.text += "\ns_waitcnt lgkmcnt(0)" + "".join(f"\nv_writelane_b32 v0, s{r}, {pend[r]}" for r in pend if pend[r] is not None)
                    pend = {100: None, 0: None}
                cur = 100 - cur
        lines = [x.text for x in prog]
        if CFG.get("clk"):
            lines = [l.replace("s_memrealtime s[100:101]", "s_memtime s[100:101]").replace("s_memrealtime s[0:1]", "s_memtime s[0:1]") for l in lines]
            k = [i for i, l in enumerate(lines) if l.startswith("v_writelane_b32 v0, s40, 0")][0]
            lines[k] = "v_writelane_b32 v0, s100, 0"
            k = [i for i, l in enumerate(lines) if l.startswith("s_memrealtime s[40:41]")][0]
            lines[k] += "\ns_memtime s[100:101]"
        abl = CFG.get("abl", "")
        if "vm" in abl:
            lines = [l for l in lines if not (l.startswith("buffer_") or l.startswith("s_cbranch_vccnz") or l.startswith("global_load"))]
        if "ahit" in abl:
            lines = [l.replace("s_mul_i32 s90, s58, 36864", "s_mov_b32 s90, 0x1a0000".replace("1a", "E0")) for l in lines]
        if "whit" in abl:
            import re as _re
            out_ = []
            for l in lines:
                if l.startswith("buffer_load_dwordx4") and "lds" in l and ("s[16:19]" in l or "s[20:23]" in l): l = l.replace("s46 offen", "0 offen")
                out_.append(l)
            lines = out_
        if "nost" in abl: lines = [l for l in lines if not (l.startswith("buffer_store_dwordx4") and "s[24:27]" in l and "v1," in l)]
        if "nochk" in abl: lines = [l for l in lines if not l.startswith("s_cbranch_vccnz")]
        if "nopoll" in abl: lines = [l for l in lines if not (l.startswith("buffer_load_dwordx2 v[22:23], v21"))]
        if "salu" in abl:
            k0 = [i for i, l in enumerate(lines) if l.startswith("s_barrier")][0]; k1 = [i for i, l in enumerate(lines) if l.startswith("s_barrier")][-1]
            lines = [l for i, l in enumerate(lines) if not (k0 < i < k1 and l.split()[0] in ("s_add_u32", "s_mul_i32", "s_lshl_b32", "s_lshr_b32", "s_and_b32", "s_mov_b32", "s_lshl1_add_u32", "s_lshl2_add_u32", "s_lshl3_add_u32", "s_lshl4_add_u32", "s_or_b32", "s_xor_b32", "s_cselect_b32", "s_sub_u32"))]
        if "valu" in abl:
            k0 = [i for i, l in enumerate(lines) if l.startswith("s_barrier")][0]; k1 = [i for i, l in enumerate(lines) if l.startswith("s_barrier")][-1]
            lines = [l for i, l in enumerate(lines) if not (k0 < i < k1 and l.startswith("v_") and not l.startswith("v_mfma") and not l.startswith("v_writelane"))]
        if "cs" in CFG.get("abl", ""): lines = [l for l in lines if not (l.startswith("buffer_load_dwordx4 v7, s[32:35]"))]
        lines = [(f"L_pc{ty}:\n" + l if l.startswith("s_getpc_b64") else l) for l in lines]
        if ty == "F":
            k = lines.index("; SPLIT")
            lines = ["L_F:"] + lines[k+1:]
        texts.append("\n".join(lines))
        cnt = {}
        for x in prog: cnt[x.kind] = cnt.get(x.kind, 0) + 1
        sys.stderr.write(f"type {ty}: {len(prog)} instrs, nop states {st} {cnt}\n")
    hdr = open("cdna_kernels/" + KN + ".s.ref").read().split("; Override launch")[0]
    sets = ""
    return hdr + f"""; bars={CFG["bars"]}
; @launch grid=(256,1,1) block=(512,1,1) lds=163840
.amdgcn_target "amdgcn-amd-amdhsa--gfx950"
.text
.globl {KN}_kernel
.p2align 8
.type {KN}_kernel,@function
{KN}_kernel:
""" + texts[0] + "\n" + texts[1] + "\n" + "\n".join(slow) + f"""
L_end:
s_endpgm
{sets}.section .rodata,"a"
.p2align 6
.amdhsa_kernel {KN}_kernel
  .amdhsa_next_free_vgpr 256
  .amdhsa_next_free_sgpr 102
  .amdhsa_accum_offset 256
  .amdhsa_group_segment_fixed_size 0
  .amdhsa_kernarg_size 80
  .amdhsa_user_sgpr_count 2
  .amdhsa_user_sgpr_kernarg_segment_ptr 1
  .amdhsa_system_sgpr_workgroup_id_x 1
  .amdhsa_float_denorm_mode_32 3
.end_amdhsa_kernel
"""

def make(out, **kw):
    import subprocess, re
    save = dict(CFG); CFG.update(kw)
    try:
        txt = generate()
        if CFG["pfcode"]:
            open("_g.s", "w").write(txt.replace("PFMAX_A", "0x1230"))
            subprocess.run("clang -x assembler -target amdgcn-amd-amdhsa -mcpu=gfx950 -c _g.s -o _g.o", shell=True, check=True)
            sy = subprocess.run("llvm-readelf -s _g.o", shell=True, capture_output=True, text=True).stdout
            ad = {m.group(2): int(m.group(1), 16) for m in re.finditer(r": ([0-9a-f]{16}) .* (L_\w+)$", sy, re.M)}
            txt = txt.replace("PFMAX_A", hex((ad["L_end"] - ad["L_pcT"] - 64) & ~127))
        open(out, "w").write(txt)
    finally:
        CFG.clear(); CFG.update(save)

if __name__ == "__main__":
    out = sys.argv[1] if len(sys.argv) > 1 else "cdna_kernels/" + KN + ".s"
    kw = {}
    for a in sys.argv[2:]:
        if a == "--stamps": kw["stamps"] = True
        else:
            k, v = a.split("=", 1); kw[k] = json.loads(v)
    make(out, **kw)
```
